```python
import torch

def _softmax(x, axis=-1):
    return torch.softmax(x, dim=axis)

def _gelu(x):
    return torch.nn.functional.gelu(x, approximate='tanh')

def _silu(x):
    return torch.nn.functional.silu(x)

def _sigmoid(x):
    return torch.sigmoid(x)

def _layernorm(x, axis=-1, eps=1e-05):
    m = x.mean(dim=axis, keepdim=True)
    v = x.var(dim=axis, keepdim=True, unbiased=False)
    return (x - m) / torch.sqrt(v + eps)

def _scatter_add(tgt, idx, src, axis=0):
    return tgt.clone().index_add_(axis, idx, src)

def _segment_sum(src, seg, n):
    out = torch.zeros((n,) + src.shape[1:], dtype=src.dtype)
    return out.index_add_(0, seg, src)

def _pad(x, pw):
    flat = tuple((v for pair in reversed(pw) for v in pair))
    return torch.nn.functional.pad(x, flat)
kernel_name = 'adaLN_cond__linear_kernel_hedgehog__glu_gated_swiglu__prompt'

def setup_inputs():

    _w = lambda a: (lambda t: t.to(torch.bfloat16) if t.is_floating_point() else t)(torch.as_tensor(a))

    def _A_setup():
        B, S, D, H = (1, 2048, 1024, 32)
        Dh = D // H
        return {'x': _w((lambda *s: torch.randn(*s, dtype=torch.bfloat16) * 0.05)(B, S, D)), 'wqkv': _w((lambda *s: torch.randn(*s, dtype=torch.bfloat16) * 0.4)(D, 3 * D)), 'w_phi': _w((lambda *s: torch.randn(*s, dtype=torch.bfloat16) * 0.4)(H, Dh, Dh) * Dh ** (-0.5)), 'wo': _w((lambda *s: torch.randn(*s, dtype=torch.bfloat16) * 0.1)(D, D))}
    _A_in = _A_setup()

    def _B_setup():
        B, S, D, F = (1, 2048, 1024, 3584)
        return {'x': _w((lambda *s: torch.randn(*s, dtype=torch.bfloat16) * 0.05)(B, S, D)), 'w1': _w((lambda *s: torch.randn(*s, dtype=torch.bfloat16) * 1.6)(D, F) * (2.0 / D) ** 0.5), 'w3': _w((lambda *s: torch.randn(*s, dtype=torch.bfloat16) * 1.6)(D, F) * (2.0 / D) ** 0.5), 'w2': _w((lambda *s: torch.randn(*s, dtype=torch.bfloat16) * 1.6)(F, D) * (2.0 / F) ** 0.5)}
    _B_in = _B_setup()
    return {'A_x': _A_in['x'], 'A_wqkv': _A_in['wqkv'], 'A_w_phi': _A_in['w_phi'], 'A_wo': _A_in['wo'], 'B_x': _B_in['x'], 'B_w1': _B_in['w1'], 'B_w3': _B_in['w3'], 'B_w2': _B_in['w2'], 'c': _w((lambda *s: torch.randn(*s, dtype=torch.bfloat16) * 0.1)(1, 1024) * 8.0), 'w_mod': _w((lambda *s: torch.randn(*s, dtype=torch.bfloat16) * 0.1)(1024, 6 * 1024) * 1024 ** (-0.5) * 8.0)}

def reference(A_x, A_wqkv, A_w_phi, A_wo, B_x, B_w1, B_w3, B_w2, c, w_mod):

    def _A_ref(x, wqkv, w_phi, wo):
        B, S, D = x.shape
        H = 32
        Dh = D // H
        qkv = (lambda x, *d: x.permute(*d))((x @ wqkv).reshape(B, S, 3, H, Dh), 2, 0, 3, 1, 4)
        q, k, v = (qkv[0], qkv[1], qkv[2])
        pq = torch.einsum('bhsd,hdf->bhsf', q, w_phi)
        pk = torch.einsum('bhsd,hdf->bhsf', k, w_phi)
        phi_q = torch.concatenate([_softmax(pq, axis=-1), _softmax(-pq, axis=-1)], axis=-1)
        phi_k = torch.concatenate([_softmax(pk, axis=-1), _softmax(-pk, axis=-1)], axis=-1)
        kv = torch.einsum('bhsf,bhsd->bhfd', phi_k, v)
        z = torch.einsum('bhsf->bhf', phi_k)
        num = torch.einsum('bhqf,bhfd->bhqd', phi_q, kv)
        den = torch.einsum('bhqf,bhf->bhq', phi_q, z)[..., None] + 1e-06
        o = num / den
        return (lambda x, *d: x.permute(*d))(o, 0, 2, 1, 3).reshape(B, S, D) @ wo

    def _B_ref(x, w1, w3, w2):
        gate = torch.einsum('bsd,df->bsf', x, w1)
        up = torch.einsum('bsd,df->bsf', x, w3)
        h = _silu(gate) * up
        out = torch.einsum('bsf,fd->bsd', h, w2)
        return out
    x = A_x
    mod = (_silu(c) @ w_mod).reshape(c.shape[0], 6, 1, -1)
    sa, ca, ga, sb, cb, gb = (mod[:, 0].clone(), mod[:, 1].clone(), mod[:, 2].clone(), mod[:, 3].clone(), mod[:, 4].clone(), mod[:, 5].clone())
    h = _layernorm(x, axis=-1) * (1 + ca) + sa
    x = x + ga * _A_ref(h, A_wqkv, A_w_phi, A_wo)
    h = _layernorm(x, axis=-1) * (1 + cb) + sb
    x = x + gb * _B_ref(h, B_w1, B_w3, B_w2)
    return x
```

```python
class K:
    def __init__(self, name, grid, block, lds, vgpr, sgpr=96, accum=None):
        self.name, self.grid, self.block, self.lds = name, grid, block, lds
        self.vgpr, self.sgpr = vgpr, sgpr
        self.accum = accum
        self.L = []
        self.lbl = 0
    def __call__(self, s):
        for line in s.split("\n"):
            line = line.strip()
            if line: self.L.append("    " + line if not line.endswith(":") else line)
    def label(self, base="L"):
        self.lbl += 1
        return f"{base}_{self.name}_{self.lbl}"
    def launch(self):
        return f"; @launch kernel={self.name} grid=({self.grid},1,1) block=({self.block},1,1) lds={self.lds}"
    def body(self):
        n = self.name
        return f".globl {n}\n.p2align 8\n.type {n},@function\n{n}:\n" + "\n".join(self.L) + "\n"
    def kd(self):
        acc = self.accum if self.accum is not None else min(256, (self.vgpr + 3) // 4 * 4)
        return f""".p2align 6
.amdhsa_kernel {self.name}
  .amdhsa_next_free_vgpr {self.vgpr}
  .amdhsa_next_free_sgpr {self.sgpr}
  .amdhsa_accum_offset {acc}
  .amdhsa_group_segment_fixed_size 0
  .amdhsa_kernarg_size 104
  .amdhsa_user_sgpr_count 2
  .amdhsa_user_sgpr_kernarg_segment_ptr 1
  .amdhsa_system_sgpr_workgroup_id_x 1
.end_amdhsa_kernel
"""

def vr(a, n): return f"v[{a}:{a+n-1}]" if n > 1 else f"v{a}"
def ar(a, n): return f"a[{a}:{a+n-1}]" if n > 1 else f"a{a}"
def sr(a, n): return f"s[{a}:{a+n-1}]" if n > 1 else f"s{a}"

def interleave(main, fill, start=0, every=1):
    out = []; fi = 0
    for i, m in enumerate(main):
        out.append(m)
        if i >= start and (i - start) % every == 0 and fi < len(fill):
            out.append(fill[fi]); fi += 1
    out.extend(fill[fi:])
    return out

def emit_file(path, kernels, order=None, header=""):
    order = order or kernels
    s = header + "\n".join(k.launch() for k in order) + "\n"
    s += '.amdgcn_target "amdgcn-amd-amdhsa--gfx950"\n.text\n'
    seen = []
    for k in kernels:
        if k.name not in seen:
            seen.append(k.name); s += k.body()
    s += '.section .rodata,"a"\n'
    seen = []
    for k in kernels:
        if k.name not in seen:
            seen.append(k.name); s += k.kd()
    open(path, "w").write(s)
```

```python
from kernels import *

def k_ffn1c(name="ffn1_kernel", opt=None):
    opt = opt or {}
    S = 4; P = 3
    STG = 16896
    WS = opt.get("WS", 1)
    k = K(name, 256, 256, S * STG, 512, accum=256)
    end = k.label("end")
    k(f"s_cmp_ge_u32 s2, 256\ns_cbranch_scc1 {end}")
    stamp(k, 0, opt)
    k("s_load_dwordx4 s[4:7], s[0:1], 40")
    k("s_load_dwordx2 s[8:9], s[0:1], 96")
    k("v_lshrrev_b32 v1, 6, v0")
    k("v_and_b32 v2, 63, v0")
    k("v_readfirstlane_b32 s12, v1")
    k("s_and_b32 s10, s2, 7\ns_lshr_b32 s11, s2, 3")
    k("s_and_b32 s13, s11, 3\ns_lshl_b32 s10, s10, 2\ns_add_u32 s10, s10, s13")
    k("s_lshr_b32 s11, s11, 2")
    k("s_and_b32 s14, s10, 1")
    if WS == 1: k("s_mov_b32 s44, 0")
    else: k(f"s_lshl_b32 s44, s13, 1\ns_add_u32 s44, s44, s11\ns_and_b32 s44, s44, {WS-1}")
    k("v_lshlrev_b32 v3, 4, v2")
    k("s_lshl_b32 s15, s12, 12")
    k("v_add_u32 v3, s15, v3")
    k("v_lshrrev_b32 v6, 4, v2")
    k("v_and_b32 v7, 15, v2")
    k("v_lshlrev_b32 v8, 1, v6")
    k("v_xor_b32 v7, v7, v8")
    k("s_lshl_b32 s15, s14, 1")
    k("v_add_u32 v9, s15, v7")
    k("v_subrev_u32 v10, 14, v9")
    k("v_cmp_le_u32 vcc, 14, v9")
    k("s_nop 1")
    k("v_cndmask_b32 v9, v9, v10, vcc")
    k("s_lshl_b32 s15, s12, 3")
    k("v_add_u32 v6, s15, v6")
    k("v_mul_u32_u24 v6, 7168, v6")
    k("v_lshl_add_u32 v4, v9, 4, v6")
    k("v_mov_b32 v10, 0x40000000")
    k("v_cmp_le_u32 vcc, 14, v7")
    k("s_nop 1")
    k("v_cndmask_b32 v4, v4, v10, vcc")
    k(f"v_add_u32 v5, {4*7168 - 2048}, v4")
    k("v_lshrrev_b32 v6, 4, v2")
    k("v_bfe_u32 v7, v2, 2, 2")
    k("v_and_b32 v12, 3, v2")
    k("v_mul_u32_u24 v13, 4224, v6")
    k("v_lshl_add_u32 v13, v7, 8, v13")
    k("v_lshl_add_u32 v13, v12, 3, v13")
    for tl in range(4):
        k(f"v_xor_b32 v14, {tl}, v7")
        k(f"v_lshl_add_u32 v{8+tl}, v14, 5, v13")
    k("s_waitcnt lgkmcnt(0)")
    k(f"s_lshl_b32 s15, s11, 14")
    k(f"s_add_u32 s32, s8, s15\ns_addc_u32 s33, s9, 0")
    k(f"s_add_u32 s32, s32, {H2_OFF}\ns_addc_u32 s33, s33, 0")
    k(f"s_sub_u32 s34, {4*MB}, s15")
    srd(k, 16, "s32", "s33", "s34")
    k("s_mul_i32 s15, s10, 224")
    for (lo, hi, d, sub) in (("s4", "s5", 20, 0), ("s6", "s7", 24, 1024)):
        k(f"s_add_u32 s32, {lo}, s15\ns_addc_u32 s33, {hi}, 0")
        if sub: k(f"s_sub_u32 s32, s32, {sub}\ns_subb_u32 s33, s33, 0")
        k(f"s_sub_u32 s34, {1024*7168 + sub}, s15")
        srd(k, d, "s32", "s33", "s34")
    k(f"s_add_u32 s32, s8, {HH_OFF}\ns_addc_u32 s33, s9, 0")
    srd(k, 28, "s32", "s33", 2048 * 3584 * 2)
    k("s_mul_i32 s36, s12, 4224")
    k("s_mov_b32 s42, 0\ns_mov_b32 s43, s44")
    def nxt():
        L = ["s_add_u32 s45, s42, s43"] + (["s_and_b32 s45, s45, 3"] if opt.get("l2hit") else []) + ["s_lshl_b32 s37, s45, 17", f"s_mul_i32 s38, s45, {32*7168}"]
        if WS == 1: L += ["s_add_u32 s42, s42, 1"]
        else: L += ["s_add_u32 s43, s43, 1", f"s_and_b32 s43, s43, {WS-1}", "s_cmp_eq_u32 s43, s44", f"s_cselect_b32 s45, {WS}, 0", "s_add_u32 s42, s42, s45"]
        return L
    WF = 0; AR = 64
    def dma():
        return ["buffer_load_dwordx4 v4, s[20:23], s38 offen lds",
                "buffer_load_dwordx4 v4, s[24:27], s38 offen offset:1024 lds",
                "buffer_load_dwordx4 v5, s[20:23], s38 offen offset:2048 lds",
                "buffer_load_dwordx4 v5, s[24:27], s38 offen offset:3072 lds"]
    def lda(slot):
        return [f"buffer_load_dwordx4 {ar(AR+slot*16+i*4,4)}, v3, s[16:19], s37 offen offset:{i*1024}" for i in range(4)]
    def rd(slot, tt):
        t, mat = tt >> 1, tt & 1
        o = slot * STG + mat * 1024 + (t >> 2) * 128
        return [f"ds_read_b64_tr_b16 {ar(WF+tt*4,2)}, v{8+(t&3)} offset:{o}", f"ds_read_b64_tr_b16 {ar(WF+tt*4+2,2)}, v{8+(t&3)} offset:{o+2048}"]
    ACC = 32
    def acc(tt, i): return ACC + (tt * 4 + i) * 4
    for s in range(P):
        for x in nxt(): k(x)
        k(f"s_add_u32 m0, s36, {s*STG}\ns_nop 0")
        for d in dma(): k(d)
        for d in lda(s): k(d)
        if s == 0:
            for r in range(224): k(f"v_mov_b32 v{ACC+r}, 0")
    k(f"s_waitcnt vmcnt({8*(P-1)})\ns_barrier")
    for tt in range(14):
        for x in rd(0, tt): k(x)
    k("s_mov_b32 s41, 8")
    loop = k.label("loop")
    stamp(k, 1, opt)
    k(".p2align 6")
    k(f"{loop}:")
    for u in range(4):
        ns = (u + 1) % 4; ls = (u + 3) % 4
        k(f"s_waitcnt vmcnt({(4 if (opt.get('noA') or opt.get('noW')) else 8)*(P-2)})")
        k("s_barrier")
        extra = nxt() + [f"s_add_u32 m0, s36, {ls*STG}"]
        ld = dma() + lda(ls)
        if u == 3: tail = ["s_sub_u32 s41, s41, 1", "s_cmp_lg_u32 s41, 0"]
        else: tail = []
        ei = 0; li = 0
        for tt in range(14):
            younger = min(15, 26)
            k(f"s_waitcnt lgkmcnt({younger})")
            for i in range(4):
                if not opt.get("nomfma"):
                    k(f"v_mfma_f32_16x16x32_bf16 {vr(acc(tt,i),4)}, {ar(WF+tt*4,4)}, {ar(AR+u*16+i*4,4)}, {vr(acc(tt,i),4)}")
                if i < 2 and tt > 0:
                    if not opt.get("noread"): k(rd(ns, tt - 1)[i])
                elif i == 2 or (i < 2 and tt == 0):
                    if ei < len(extra):
                        k(extra[ei]); ei += 1
                        if ei < len(extra): k(extra[ei]); ei += 1
                    elif li < len(ld):
                        if not (opt.get("nodma") or (opt.get("noA") and " lds" not in ld[li]) or (opt.get("noW") and " lds" in ld[li])): k(ld[li])
                        li += 1
                    elif tail: k(tail.pop(0))
        assert ei == len(extra) and li == len(ld), (ei, li)
        if not opt.get("noread"):
            for x in rd(ns, 13): k(x)
        for x in tail: k(x)
    k(f"s_cbranch_scc1 {loop}")
    stamp(k, 2, opt)
    if opt.get("noepi"):
        stamp(k, 3, opt); stamp_flush(k, 4, opt)
        k(f"{end}:\ns_endpgm")
        return k
    k(f"s_mov_b32 s42, {NLOG2E}\ns_mov_b32 s43, {NLOG2E}\ns_mov_b32 s44, 1.0\ns_mov_b32 s45, 1.0")
    k("s_lshl_b32 s15, s11, 14")
    k("v_add_u32 v3, s15, v3")
    k("s_mul_i32 s32, s10, 7")
    k("s_add_u32 s33, s32, 1\ns_lshr_b32 s33, s33, 1\ns_lshl_b32 s46, s33, 17")
    k("s_add_u32 s47, s46, 0x20000\ns_add_u32 s48, s46, 0x40000")
    k("s_add_u32 s49, s46, 0x60000\ns_sub_u32 s33, s46, 0x1fff8")
    k("s_cmp_eq_u32 s14, 1\ns_cselect_b32 s49, s33, s49")
    k("s_nop 4")
    cnt = 0
    for i in range(4):
        for t in range(7):
            X, Y = acc(2 * t, i), acc(2 * t + 1, i)
            Tm = 8 + 4 * (cnt & 1)
            o = 16 + ((cnt >> 1) & 3) * 4 + (t & 1) * 2 if t < 6 else 4 + 2 * (i & 1)
            if t < 6: cnt += 1
            k(f"v_pk_mul_f32 {vr(Tm,2)}, {vr(X,2)}, s[42:43]")
            k(f"v_pk_mul_f32 {vr(Tm+2,2)}, {vr(X+2,2)}, s[42:43]")
            for r in range(4): k(f"v_exp_f32 v{Tm+r}, v{Tm+r}")
            k(f"v_pk_mul_f32 {vr(X,2)}, {vr(X,2)}, {vr(Y,2)}")
            k(f"v_pk_add_f32 {vr(Tm,2)}, {vr(Tm,2)}, s[44:45]")
            k(f"v_pk_add_f32 {vr(Tm+2,2)}, {vr(Tm+2,2)}, s[44:45]")
            k(f"v_pk_mul_f32 {vr(X+2,2)}, {vr(X+2,2)}, {vr(Y+2,2)}")
            for r in range(4): k(f"v_rcp_f32 v{Tm+r}, v{Tm+r}")
            k("s_nop 0")
            k(f"v_pk_mul_f32 {vr(X,2)}, {vr(X,2)}, {vr(Tm,2)}")
            k(f"v_pk_mul_f32 {vr(X+2,2)}, {vr(X+2,2)}, {vr(Tm+2,2)}")
            k(f"v_cvt_pk_bf16_f32 v{o}, v{X}, v{X+1}")
            k(f"v_cvt_pk_bf16_f32 v{o+1}, v{X+2}, v{X+3}")
            if t & 1:
                k(f"buffer_store_dwordx4 {vr(o-2,4)}, v3, s[28:31], s{46+t//2} offen offset:{1024*i}")
            elif t == 6:
                k(f"buffer_store_dwordx2 {vr(o,2)}, v3, s[28:31], s49 offen offset:{1024*i}")
    if opt.get("stamp"): k("s_waitcnt vmcnt(0)")
    stamp(k, 3, opt); stamp_flush(k, 4, opt)
    k(f"{end}:\ns_endpgm")
    return k
```

```python
from asmlib import *
MB = 1 << 20
MOD_OFF = 0
H1_OFF = 1 * MB
O_OFF = 5 * MB
X1_OFF = 9 * MB
H2_OFF = 13 * MB
PHIQ_OFF = 17 * MB
KVP_OFF = 25 * MB
HH_OFF = 32 * MB
NLOG2E = 0xBFB8AA3B
LOG2E = 0x3FB8AA3B

def srd(k, d, lo, hi, nrec):
    k(f"s_mov_b32 s{d}, {lo}")
    k(f"s_and_b32 s{d+1}, {hi}, 0xffff")
    k(f"s_mov_b32 s{d+2}, {nrec}")
    k(f"s_mov_b32 s{d+3}, 0x20000")

STAMP_OFF = 200 * MB
def stamp(k, idx, opt):
    if not opt.get("stamp"): return
    k(f"s_memtime s[{60+4*idx}:{61+4*idx}]")
    k(f"s_memrealtime s[{62+4*idx}:{63+4*idx}]")
def stamp_flush(k, n, opt, ws_lo="s8", ws_hi="s9", wave="s12", nwaves=8):
    if not opt.get("stamp"): return
    k("s_waitcnt lgkmcnt(0) vmcnt(0)")
    k(f"s_add_u32 s32, {ws_lo}, {STAMP_OFF}\ns_addc_u32 s33, {ws_hi}, 0")
    srd(k, 52, "s32", "s33", 1 << 20)
    k(f"s_mul_i32 s34, s2, {nwaves}\ns_add_u32 s34, s34, {wave}\ns_lshl_b32 s34, s34, 7")
    k("v_mov_b32 v1, 0")
    for i in range(4 * n):
        k(f"v_mov_b32 v4, s{60+i}")
        k(f"buffer_store_dword v4, v1, s[52:55], s34 offen offset:{4*i}")

def k_ffn1(name="ffn1_kernel", S=5, opt=None):
    opt = opt or {}
    STG = 32768
    k = K(name, 256, 512, S * STG, 256)
    end = k.label("end")
    k(f"s_cmp_ge_u32 s2, 256\ns_cbranch_scc1 {end}")
    stamp(k, 0, opt)
    k("s_load_dwordx4 s[4:7], s[0:1], 40")
    k("s_load_dwordx2 s[8:9], s[0:1], 96")
    k("v_lshrrev_b32 v1, 6, v0")
    k("v_and_b32 v2, 63, v0")
    k("v_readfirstlane_b32 s12, v1")
    k("s_and_b32 s10, s2, 7\ns_lshr_b32 s11, s2, 3")
    k("s_and_b32 s13, s11, 3\ns_lshl_b32 s10, s10, 2\ns_add_u32 s10, s10, s13")
    k("s_lshr_b32 s11, s11, 2")
    k("s_and_b32 s13, s12, 3")
    k("s_lshr_b32 s14, s12, 2")
    k("v_lshlrev_b32 v3, 4, v2")
    k("s_lshl_b32 s15, s12, 11")
    k("v_add_u32 v3, s15, v3")
    k("v_lshrrev_b32 v6, 4, v2")
    k("v_and_b32 v7, 15, v2")
    k("s_lshr_b32 s15, s12, 1\ns_and_b32 s15, s15, 1\ns_lshl_b32 s15, s15, 3")
    k("v_lshlrev_b32 v8, 1, v6")
    k("v_or_b32 v8, s15, v8")
    k("v_xor_b32 v7, v7, v8")
    k("s_lshl_b32 s15, s12, 2")
    k("v_add_u32 v6, s15, v6")
    k("v_mul_u32_u24 v6, 7168, v6")
    k("v_mov_b32 v10, 0x40000000")
    for mat, vd in ((0, 4), (1, 5)):
        if mat: k("v_xor_b32 v7, 1, v7")
        k("v_cmp_eq_u32 vcc, 14, v7")
        k("s_nop 1")
        k("v_cndmask_b32 v9, v7, 7, vcc")
        k(f"v_lshl_add_u32 v{vd}, v9, 4, v6")
        k("v_and_b32 v9, 7, v7")
        k("v_cmp_eq_u32 vcc, 7, v9")
        k("s_nop 1")
        k(f"v_cndmask_b32 v{vd}, v{vd}, v10, vcc")
    k("v_lshlrev_b32 v16, 4, v2")
    k("s_lshl_b32 s15, s13, 13")
    k("v_add_u32 v16, s15, v16")
    k("v_lshrrev_b32 v6, 4, v2")
    k("v_bfe_u32 v7, v2, 2, 2")
    k("v_bfe_u32 v8, v2, 1, 1")
    k("v_and_b32 v9, 1, v2")
    k("v_lshlrev_b32 v10, 13, v6")
    k("v_lshl_add_u32 v10, v8, 10, v10")
    k("v_lshl_add_u32 v10, v7, 8, v10")
    k("v_lshl_add_u32 v10, v9, 3, v10")
    k("v_add_u32 v10, 2048, v10")
    k("v_and_b32 v6, 1, v6")
    k("v_lshlrev_b32 v6, 3, v6")
    k("v_lshl_or_b32 v6, v7, 1, v6")
    k("v_or_b32 v6, v6, v8")
    k("s_lshl_b32 s15, s14, 3")
    k("v_xor_b32 v6, s15, v6")
    for t in range(7):
        k(f"v_xor_b32 v7, {t}, v6")
        k(f"v_lshl_add_u32 v{17+t}, v7, 4, v10")
    k("s_waitcnt lgkmcnt(0)")
    k(f"s_lshl_b32 s15, s11, 14")
    k(f"s_add_u32 s32, s8, s15\ns_addc_u32 s33, s9, 0")
    k(f"s_add_u32 s32, s32, {H2_OFF}\ns_addc_u32 s33, s33, 0")
    k(f"s_sub_u32 s34, {4*MB}, s15")
    srd(k, 16, "s32", "s33", "s34")
    k("s_mul_i32 s15, s10, 224")
    for (lo, hi, d, sub) in (("s4", "s5", 20, 2048), ("s6", "s7", 24, 3072)):
        k(f"s_add_u32 s32, {lo}, s15\ns_addc_u32 s33, {hi}, 0")
        k(f"s_sub_u32 s32, s32, {sub}\ns_subb_u32 s33, s33, 0")
        k(f"s_sub_u32 s34, {1024*7168 + sub}, s15")
        srd(k, d, "s32", "s33", "s34")
    k(f"s_add_u32 s32, s8, {HH_OFF}\ns_addc_u32 s33, s9, 0")
    srd(k, 28, "s32", "s33", 2048 * 3584 * 2)
    k("s_lshl_b32 s36, s12, 12")
    k("s_mov_b32 s37, 0\ns_mov_b32 s38, 0")
    def dma():
        return ["buffer_load_dwordx4 v3, s[16:19], s37 offen lds",
                "buffer_load_dwordx4 v3, s[16:19], s37 offen offset:1024 lds",
                "buffer_load_dwordx4 v4, s[20:23], s38 offen offset:2048 lds",
                "buffer_load_dwordx4 v5, s[24:27], s38 offen offset:3072 lds"]
    adv = ["s_add_u32 s37, s37, 131072", f"s_add_u32 s38, s38, {32*7168}"]
    for s in range(S):
        k(f"s_add_u32 m0, s36, {s*STG}\ns_nop 0")
        for d in dma(): k(d)
        for a in adv: k(a)
    ACC = 144
    def acc(t, i): return ACC + (t * 4 + i) * 4
    for r in range(112): k(f"v_mov_b32 v{ACC+r}, 0")
    FX, FY = 56, 100
    def fa(F, i): return F + 4 * i
    def fw(F, t): return F + 16 + 4 * t
    def reads(F, va, vw):
        R = []
        aoff = [0, 1024, 4096, 5120]
        ra = [f"ds_read_b128 {vr(fa(F,i),4)}, v{va} offset:{aoff[i]}" for i in range(4)]
        rw = []
        for t in range(7):
            rw.append([f"ds_read_b64_tr_b16 {vr(fw(F,t),2)}, v{vw+t}", f"ds_read_b64_tr_b16 {vr(fw(F,t)+2,2)}, v{vw+t} offset:4096"])
        R = rw[0] + ra
        for t in range(1, 7): R += rw[t]
        return R
    k(f"s_waitcnt vmcnt({4*(S-1)})\ns_barrier")
    for r in reads(FX, 16, 17): k(r)
    k("s_mov_b32 s50, 0x20000000")
    k(f"s_mov_b32 s39, {STG}\ns_mov_b32 s40, 0\ns_mov_b32 s41, 16")
    loop = k.label("loop")
    stamp(k, 1, opt)
    k(".p2align 6")
    k(f"{loop}:")
    for (F, G) in ((FX, FY), (FY, FX)):
        k(f"s_waitcnt vmcnt({4*(S-2)}) lgkmcnt(0)")
        k("s_barrier")
        mf = [f"v_mfma_f32_16x16x32_bf16 {vr(acc(t,i),4)}, {vr(fw(F,t),4)}, {vr(fa(F,i),4)}, {vr(acc(t,i),4)}" for t in range(7) for i in range(4)]
        addr = [f"v_add_u32 v{24+j}, s39, v{16+j}" for j in range(8)]
        rd = reads(G, 24, 25)
        d = dma()
        fill = [[] for _ in range(28)]
        fill[0] = ["s_add_u32 m0, s36, s40", addr[1], addr[0]]
        fill[1] = [rd[0], rd[1]]
        fill[2] = [d[0], addr[2]]
        fill[3] = [rd[2], rd[3]]
        fill[4] = [rd[4], rd[5]]
        fill[5] = [addr[3], rd[6]]
        fill[6] = [rd[7], addr[4]]
        fill[7] = [d[1]]
        fill[8] = [rd[8], rd[9]]
        fill[9] = [addr[5], rd[10]]
        fill[10] = [rd[11], addr[6]]
        fill[11] = [rd[12], rd[13]]
        fill[12] = [d[2]]
        fill[13] = [addr[7], rd[14]]
        fill[14] = [rd[15]]
        fill[15] = [rd[16], rd[17]]
        fill[17] = [d[3]]
        fill[18] = adv
        fill[19] = ["s_mov_b32 s40, s39", f"s_add_u32 s39, s39, {STG}"]
        fill[20] = [f"s_cmp_eq_u32 s39, {S*STG}", "s_cselect_b32 s39, 0, s39"]
        if F == FY:
            fill[21] = ["s_sub_u32 s41, s41, 1"]
            fill[27] = ["s_cmp_lg_u32 s41, 0"]
        for i in range(28):
            if not opt.get("nomfma"): k(mf[i])
            for f in fill[i]:
                if opt.get("noread") and f.startswith("ds_read"): continue
                if opt.get("noreadtr") and f.startswith("ds_read_b64"): continue
                if opt.get("noreada") and f.startswith("ds_read_b128"): continue
                if opt.get("nodma") and f.startswith("buffer_load"): continue
                if opt.get("nodmaA") and f.startswith("buffer_load") and "s37" in f: f = f.replace("s37", "s50")
                if opt.get("nodmaW") and f.startswith("buffer_load") and "s38" in f: f = f.replace("s38", "s50")
                k(f)
    k(f"s_cbranch_scc1 {loop}")
    stamp(k, 2, opt)
    if opt.get("noepi"):
        stamp(k, 3, opt); stamp_flush(k, 4, opt)
        k(f"{end}:\ns_endpgm")
        return k
    k(f"s_mov_b32 s42, {NLOG2E}\ns_mov_b32 s43, {NLOG2E}\ns_mov_b32 s44, 1.0\ns_mov_b32 s45, 1.0")
    k("v_lshrrev_b32 v6, 5, v2")
    k("s_lshl_b32 s15, s11, 4\ns_lshl_b32 s32, s13, 2\ns_add_u32 s15, s15, s32\ns_lshl_b32 s15, s15, 10")
    k("v_lshlrev_b32 v6, 10, v6")
    k("v_and_b32 v7, 31, v2")
    k("v_lshl_add_u32 v3, v7, 4, v6")
    k("v_add_u32 v3, s15, v3")
    k("s_mul_i32 s32, s10, 7")
    k("s_lshl_b32 s33, s14, 2\ns_add_u32 s33, s33, s32")
    def boff(dst, src):
        k(f"s_lshr_b32 s34, {src}, 1\ns_lshl_b32 s34, s34, 17\ns_and_b32 s35, {src}, 1\ns_lshl_b32 s35, s35, 9\ns_add_u32 {dst}, s34, s35")
    for j in range(3):
        boff(f"s{46+j}", "s33")
        k("s_add_u32 s33, s33, 1")
    k("s_add_u32 s32, s32, 3")
    boff("s49", "s32")
    k("s_lshl_b32 s34, s14, 3\ns_add_u32 s49, s49, s34")
    k("s_nop 7")
    T = 32
    OUT = 56
    for p in range(2):
        for t in range(7):
            X, Y = acc(t, 2 * p), acc(t, 2 * p + 1)
            Tm = T + 4 * (t & 1)
            o = OUT + p * 16 + t * 2
            for r in range(4): k(f"v_permlane32_swap_b32 v{X+r}, v{Y+r}")
            k(f"v_pk_mul_f32 {vr(Tm,2)}, {vr(X,2)}, s[42:43]")
            k(f"v_pk_mul_f32 {vr(Tm+2,2)}, {vr(X+2,2)}, s[42:43]")
            for r in range(4): k(f"v_exp_f32 v{Tm+r}, v{Tm+r}")
            k(f"v_pk_mul_f32 {vr(X,2)}, {vr(X,2)}, {vr(Y,2)}")
            k(f"v_pk_add_f32 {vr(Tm,2)}, {vr(Tm,2)}, s[44:45]")
            k(f"v_pk_add_f32 {vr(Tm+2,2)}, {vr(Tm+2,2)}, s[44:45]")
            k(f"v_pk_mul_f32 {vr(X+2,2)}, {vr(X+2,2)}, {vr(Y+2,2)}")
            for r in range(4): k(f"v_rcp_f32 v{Tm+r}, v{Tm+r}")
            k("s_nop 0")
            k(f"v_pk_mul_f32 {vr(X,2)}, {vr(X,2)}, {vr(Tm,2)}")
            k(f"v_pk_mul_f32 {vr(X+2,2)}, {vr(X+2,2)}, {vr(Tm+2,2)}")
            k(f"v_cvt_pk_bf16_f32 v{o}, v{X}, v{X+1}")
            k(f"v_cvt_pk_bf16_f32 v{o+1}, v{X+2}, v{X+3}")
            if t & 1:
                k(f"buffer_store_dwordx4 {vr(o-2,4)}, v3, s[28:31], s{46+t//2} offen offset:{2048*p}")
            elif t == 6:
                k(f"buffer_store_dwordx2 {vr(o,2)}, v3, s[28:31], s49 offen offset:{2048*p}")
    if opt.get("stamp"): k("s_waitcnt vmcnt(0)")
    stamp(k, 3, opt); stamp_flush(k, 4, opt)
    k(f"{end}:\ns_endpgm")
    return k

def k_empty(name="empty_kernel", grid=256, block=256):
    k = K(name, grid, block, 0, 8, 16)
    k("s_endpgm")
    return k
```

```python
from kernels import *

def k_proj(name, KB, A_OFF, w_arg, res_ws_off, gate_idx, out_ws_off, opt=None):
    opt = opt or {}
    D = opt.get("D", 3)
    WS = opt.get("WS", 1)
    NS = KB // 4
    assert NS % WS == 0
    k = K(name, 256, 256, 96 * 1024, 512, accum=256)
    end = k.label("end")
    k(f"s_cmp_ge_u32 s2, 256\ns_cbranch_scc1 {end}")
    stamp(k, 0, opt)
    k(f"s_load_dwordx2 s[4:5], s[0:1], {w_arg}")
    k("s_load_dwordx2 s[8:9], s[0:1], 96")
    k(f"s_load_dwordx2 s[6:7], s[0:1], {0 if res_ws_off is None else 80}")
    k("v_lshrrev_b32 v1, 6, v0")
    k("v_and_b32 v2, 63, v0")
    k("v_readfirstlane_b32 s12, v1")
    k("s_and_b32 s13, s2, 7\ns_lshr_b32 s14, s2, 3")
    MAP = opt.get("map", "8x4")
    if MAP == "8x4":
        k("s_and_b32 s42, s14, 7\ns_lshr_b32 s43, s14, 3")
        k("s_lshr_b32 s15, s13, 1\ns_lshl_b32 s15, s15, 3\ns_add_u32 s11, s15, s42")
        k("s_and_b32 s15, s13, 1\ns_lshl_b32 s15, s15, 2\ns_add_u32 s10, s15, s43")
        k("s_lshl_b32 s44, s43, 1\ns_add_u32 s44, s44, s42")
    else:
        k("s_and_b32 s42, s14, 3\ns_lshr_b32 s43, s14, 2")
        k("s_lshl_b32 s15, s13, 2\ns_add_u32 s11, s15, s42")
        k("s_mov_b32 s10, s43")
        k("s_lshl_b32 s44, s42, 1\ns_add_u32 s44, s44, s43")
    if WS == 1: k("s_mov_b32 s44, 0")
    else:
        for _ in range(4):
            k(f"s_cmp_ge_u32 s44, {WS}\ns_cselect_b32 s15, {WS}, 0\ns_sub_u32 s44, s44, s15")
    k("v_lshlrev_b32 v3, 4, v2")
    k("s_lshl_b32 s15, s12, 17")
    k("v_add_u32 v3, s15, v3")
    for i in range(4):
        k(f"s_xor_b32 s15, s12, {i}\ns_lshl_b32 s15, s15, 10")
        k(f"v_add_u32 v{4+i}, s15, v3")
    k("v_lshrrev_b32 v12, 4, v2")
    k("v_and_b32 v13, 15, v2")
    k("v_lshlrev_b32 v13, 4, v13")
    k("v_lshl_add_u32 v13, v12, 13, v13")
    k("s_lshl_b32 s15, s12, 16")
    k("v_add_u32 v8, s15, v13")
    k("v_add_u32 v9, 4096, v8\nv_add_u32 v10, 32768, v8\nv_add_u32 v11, 36864, v8")
    k("v_and_b32 v14, 15, v2")
    k("s_lshl_b32 s15, s12, 4")
    k("v_add_u32 v14, s15, v14")
    k("v_lshlrev_b32 v15, 11, v14")
    k("v_lshl_add_u32 v15, v12, 6, v15")
    k("v_lshlrev_b32 v16, 7, v12")
    k("s_mov_b32 s46, 0x05040100\ns_mov_b32 s47, 0x07060302")
    k("s_waitcnt lgkmcnt(0)")
    k("s_lshl_b32 s15, s11, 12")
    k(f"s_add_u32 s32, s8, s15\ns_addc_u32 s33, s9, 0\ns_add_u32 s32, s32, {A_OFF}\ns_addc_u32 s33, s33, 0")
    k(f"s_sub_u32 s34, {KB*131072}, s15")
    srd(k, 16, "s32", "s33", "s34")
    k("s_lshl_b32 s15, s10, 8")
    k(f"s_add_u32 s32, s4, s15\ns_addc_u32 s33, s5, 0\ns_sub_u32 s34, {KB*32*2048}, s15")
    srd(k, 20, "s32", "s33", "s34")
    k("s_lshl_b32 s35, s11, 17\ns_add_u32 s35, s35, s15")
    k(f"s_sub_u32 s34, {4*MB}, s35")
    def rm(d, wsoff):
        if wsoff is None: k("s_add_u32 s32, s6, s35\ns_addc_u32 s33, s7, 0")
        else: k(f"s_add_u32 s32, s8, s35\ns_addc_u32 s33, s9, 0\ns_add_u32 s32, s32, {wsoff}\ns_addc_u32 s33, s33, 0")
        srd(k, d, "s32", "s33", "s34")
    rm(24, res_ws_off); rm(28, out_ws_off)
    k(f"s_lshl_b32 s15, s10, 9\ns_add_u32 s15, s15, {MOD_OFF + gate_idx*4096}")
    k("s_add_u32 s32, s8, s15\ns_addc_u32 s33, s9, 0")
    srd(k, 48, "s32", "s33", 512)
    k("s_mov_b32 s36, 0\ns_mov_b32 s37, s44\ns_mov_b32 s38, 0")
    def nxt():
        L = ["s_add_u32 s45, s36, s37", "s_lshl_b32 s39, s45, 19", "s_lshl_b32 s40, s45, 18"]
        if WS == 1:
            L += ["s_add_u32 s36, s36, 1"]
        else:
            L += ["s_add_u32 s37, s37, 1", f"s_cmp_eq_u32 s37, {WS}", "s_cselect_b32 s37, 0, s37",
                  "s_cmp_eq_u32 s37, s44", f"s_cselect_b32 s45, {WS}, 0", "s_add_u32 s36, s36, s45"]
        return L
    RAW = 64
    AR = 128
    F = 32
    def loads(slot):
        L = []
        for e in range(8):
            L.append(f"buffer_load_dwordx4 {vr(RAW+slot*32+e*4,4)}, v{8+(e>>1)}, s[20:23], s40 offen offset:{(e&1)*2048}")
        A_ = [f"buffer_load_dwordx4 {ar(AR+slot*16+i*4,4)}, v{4+i}, s[16:19], s39 offen" for i in range(4)]
        return L + A_
    for s in range(D - 1):
        for x in nxt(): k(x)
        for x in loads(s): k(x)
    RES, GT = 208, 224
    for r in range(4): k(f"buffer_load_dwordx4 {vr(RES+4*r,4)}, v15, s[24:27], 0 offen offset:{16*r}")
    for r in range(4):
        k(f"buffer_load_dwordx4 {vr(GT+8*r,4)}, v16, s[48:51], 0 offen offset:{32*r}")
        k(f"buffer_load_dwordx4 {vr(GT+8*r+4,4)}, v16, s[48:51], 0 offen offset:{32*r+16}")
    for r in range(128): k(f"v_accvgpr_write_b32 a{r}, 0")
    def acc(j, i): return (j * 4 + i) * 4
    def perms(slot, j):
        R = RAW + slot * 32
        return [f"v_perm_b32 v{F+(j&3)*4+q}, v{R+(2*q+1)*4+(j>>1)}, v{R+(2*q)*4+(j>>1)}, s{46+(j&1)}" for q in range(4)]
    stamp(k, 1, opt)
    def step(slot, wait, prefetch=True):
        nl = (slot + D - 1) % D
        k(f"s_waitcnt vmcnt({wait})")
        for x in perms(slot, 0): k(x)
        fill = (nxt() + loads(nl)) if prefetch else []
        fi = 0
        for x in perms(slot, 1)[:2]: k(x)
        for j in range(8):
            pn = perms(slot, j + 1) if j < 7 else []
            if j == 0: pn = pn[2:]
            for i in range(4):
                if not opt.get("nomfma"):
                    k(f"v_mfma_f32_16x16x32_bf16 {ar(acc(j,i),4)}, {vr(F+(j&3)*4,4)}, {ar(AR+slot*16+i*4,4)}, {ar(acc(j,i),4)}")
                if i < 2:
                    for x in pn[2*i:2*i+2]: k(x)
                else:
                    n = 2 if fi < len(nxt()) else 1
                    for _ in range(n):
                        if fi < len(fill): k(fill[fi]); fi += 1
        while fi < len(fill): k(fill[fi]); fi += 1
    W0 = 12 * (D - 2)
    assert NS >= D
    nfull = NS - (D - 1)
    s = 0
    for s in range(D - 1):
        step(s % D, W0 + 12, True)
    rem = nfull - (D - 1)
    nit = rem // D
    slot = (D - 1) % D
    if nit > 0:
        k(f"s_mov_b32 s41, {nit}")
        loop = k.label("loop")
        k(".p2align 6")
        k(f"{loop}:")
        for u in range(D): step((slot + u) % D, W0, True)
        k(f"s_sub_u32 s41, s41, 1\ns_cmp_lg_u32 s41, 0\ns_cbranch_scc1 {loop}")
    for u in range(rem - nit * D):
        step(slot, W0, True); slot = (slot + 1) % D
    for u in range(D - 1):
        step(slot, 12 * (D - 2 - u), False); slot = (slot + 1) % D
    stamp(k, 2, opt)
    k("v_lshlrev_b32 v3, 4, v2")
    for i in range(1, 4):
        k(f"s_xor_b32 s15, s12, {i}\ns_mul_i32 s15, s15, 3\ns_add_u32 s15, s15, {i-1}\ns_lshl_b32 s15, s15, 13")
        k(f"v_add_u32 v{3+i}, s15, v3")
    k("s_mul_i32 s15, s12, 24576")
    k("v_add_u32 v7, s15, v3")
    k("s_nop 7")
    for i in range(1, 4):
        for j in range(8):
            k(f"ds_write_b128 v{3+i}, {ar(acc(j,i),4)} offset:{j*1024}")
    O = 64
    for j in range(8):
        for r in range(4): k(f"v_accvgpr_read_b32 v{O+j*4+r}, a{acc(j,0)+r}")
    k("s_waitcnt lgkmcnt(0)\ns_barrier")
    P = 96
    for i in range(3):
        for j in range(8):
            k(f"ds_read_b128 {vr(P+i*32+j*4,4)}, v7 offset:{i*8192+j*1024}")
    for i in range(3):
        for j in range(8):
            left = 23 - (i * 8 + j)
            k(f"s_waitcnt lgkmcnt({min(left,15)})")
            k(f"v_pk_add_f32 {vr(O+j*4,2)}, {vr(O+j*4,2)}, {vr(P+i*32+j*4,2)}")
            k(f"v_pk_add_f32 {vr(O+j*4+2,2)}, {vr(O+j*4+2,2)}, {vr(P+i*32+j*4+2,2)}")
    T = 32
    for r in range(4):
        for d in range(4):
            k(f"v_lshlrev_b32 v{T}, 16, v{RES+4*r+d}")
            k(f"v_and_b32 v{T+1}, 0xffff0000, v{RES+4*r+d}")
            k(f"v_fmac_f32 v{T}, v{GT+8*r+2*d}, v{O+(2*d)*4+r}")
            k(f"v_fmac_f32 v{T+1}, v{GT+8*r+2*d+1}, v{O+(2*d+1)*4+r}")
            k(f"v_cvt_pk_bf16_f32 v{RES+4*r+d}, v{T}, v{T+1}")
        k(f"buffer_store_dwordx4 {vr(RES+4*r,4)}, v15, s[28:31], 0 offen offset:{16*r}")
    if opt.get("stamp"): k("s_waitcnt vmcnt(0)")
    stamp(k, 3, opt); stamp_flush(k, 4, opt)
    k(f"{end}:\ns_endpgm")
    return k
```

```python
from kernels import *
KVP_STRIDE = 33 * 256

def k_qkv(name="qkv_kernel", opt=None):
    opt = opt or {}
    REG = 3136; STG = 8 * REG
    WPHI = 4 * STG
    WS = opt.get("WS", 4)
    k = K(name, 256, 256, WPHI + 4096, 512, accum=256)
    end = k.label("end")
    k(f"s_cmp_ge_u32 s2, 256\ns_cbranch_scc1 {end}")
    stamp(k, 0, opt)
    k("s_load_dwordx4 s[4:7], s[0:1], 8")
    k("s_load_dwordx2 s[8:9], s[0:1], 96")
    k("v_lshrrev_b32 v1, 6, v0")
    k("v_and_b32 v2, 63, v0")
    k("v_readfirstlane_b32 s12, v1")
    k("s_and_b32 s13, s2, 7\ns_lshr_b32 s14, s2, 3")
    k("s_and_b32 s42, s14, 7\ns_lshr_b32 s43, s14, 3")
    k("s_and_b32 s15, s13, 1\ns_lshl_b32 s15, s15, 3\ns_add_u32 s11, s15, s42")
    k("s_lshr_b32 s15, s13, 1\ns_lshl_b32 s15, s15, 2\ns_add_u32 s10, s15, s43")
    if WS == 1: k("s_mov_b32 s44, 0")
    else: k(f"s_lshl_b32 s44, s43, 1\ns_add_u32 s44, s44, s42\ns_and_b32 s44, s44, {WS-1}")
    k("v_lshlrev_b32 v13, 4, v2")
    k("s_lshl_b32 s15, s12, 11")
    k("v_add_u32 v3, s15, v13")
    k("s_lshl_b32 s15, s12, 10")
    k("v_add_u32 v12, s15, v13")
    k("v_lshrrev_b32 v6, 3, v2")
    k("v_and_b32 v7, 7, v2")
    k("v_bfe_u32 v8, v2, 4, 1")
    k("v_lshlrev_b32 v8, 1, v8")
    k("v_xor_b32 v7, v7, v8")
    k("s_lshl_b32 s15, s12, 3")
    k("v_add_u32 v6, s15, v6")
    k("v_mul_u32_u24 v6, 6144, v6")
    k("v_lshl_add_u32 v4, v7, 4, v6")
    k("v_lshrrev_b32 v6, 4, v2")
    k("v_bfe_u32 v7, v2, 2, 2")
    k("v_and_b32 v14, 3, v2")
    k(f"v_mul_u32_u24 v15, {REG}, v6")
    k("v_lshl_add_u32 v15, v7, 7, v15")
    k("v_lshl_add_u32 v15, v14, 3, v15")
    k("v_lshrrev_b32 v7, 1, v7")
    k("v_lshl_add_u32 v8, v7, 5, v15")
    k("v_xor_b32 v7, 1, v7")
    k("v_lshl_add_u32 v9, v7, 5, v15")
    k(f"v_add_u32 v10, {2*STG}, v8\nv_add_u32 v11, {2*STG}, v9")
    k("s_waitcnt lgkmcnt(0)")
    k("s_lshl_b32 s15, s11, 13")
    k(f"s_add_u32 s32, s8, s15\ns_addc_u32 s33, s9, 0\ns_add_u32 s32, s32, {H1_OFF}\ns_addc_u32 s33, s33, 0")
    k(f"s_sub_u32 s34, {4*MB}, s15")
    srd(k, 16, "s32", "s33", "s34")
    for seg in range(3):
        k(f"s_lshl_b32 s15, s10, 7\ns_add_u32 s15, s15, {1024*seg}")
        k(f"s_add_u32 s32, s4, s15\ns_addc_u32 s33, s5, 0\ns_sub_u32 s34, {1024*6144}, s15")
        srd(k, 20 + 4 * seg, "s32", "s33", "s34")
    k("s_lshl_b32 s15, s10, 12")
    k("s_add_u32 s32, s6, s15\ns_addc_u32 s33, s7, 0")
    srd(k, 48, "s32", "s33", 4096)
    k(f"s_mul_i32 s36, s12, {REG}")
    k(f"s_lshl_b32 s15, s12, 10\ns_add_u32 m0, s15, {WPHI}\ns_nop 0")
    k("buffer_load_dwordx4 v12, s[48:51], 0 offen lds")
    k("s_mov_b32 s42, 0\ns_mov_b32 s43, s44")
    def nxt():
        L = ["s_add_u32 s45, s42, s43", "s_lshl_b32 s37, s45, 18", f"s_mul_i32 s38, s45, {64*6144}",
             "s_add_u32 s39, s37, 0x20000", f"s_add_u32 s40, s38, {32*6144}"]
        if WS == 1: L += ["s_add_u32 s42, s42, 1"]
        else: L += ["s_add_u32 s43, s43, 1", f"s_and_b32 s43, s43, {WS-1}", "s_cmp_eq_u32 s43, s44", f"s_cselect_b32 s45, {WS}, 0", "s_add_u32 s42, s42, s45"]
        return L
    WF = 0; AR = 64
    def loads(slot):
        L = []
        for u in range(2):
            L.append(f"s_add_u32 m0, s36, {slot*STG + u*4*REG}")
            L.append(f"buffer_load_dwordx4 {ar(AR+slot*16+u*8,4)}, v3, s[16:19], s{37+2*u} offen")
            for seg in range(3):
                L.append(f"buffer_load_dwordx4 v4, s[{20+4*seg}:{23+4*seg}], s{38+2*u} offen offset:{1024*seg} lds")
            L.append(f"buffer_load_dwordx4 {ar(AR+slot*16+u*8+4,4)}, v3, s[16:19], s{37+2*u} offen offset:1024")
        return L
    def rd(slot, u, tt):
        seg, t = tt >> 2, tt & 3
        o = (slot & 1) * STG + u * 4 * REG + seg * 1024 + (t >> 1) * 64
        va = 8 + (t & 1) + 2 * (slot >> 1)
        return [f"ds_read_b64_tr_b16 {ar(WF+tt*4,2)}, v{va} offset:{o}", f"ds_read_b64_tr_b16 {ar(WF+tt*4+2,2)}, v{va} offset:{o+512}"]
    ACC = 160
    def acc(tt, i): return ACC + (tt * 2 + i) * 4
    for s in range(3):
        for x in nxt(): k(x)
        for x in loads(s): k(x)
        if s == 0:
            for r in range(96): k(f"v_mov_b32 v{ACC+r}, 0")
    k("s_waitcnt vmcnt(20)\ns_barrier")
    for tt in range(12):
        for x in rd(0, 0, tt): k(x)
    k("s_mov_b32 s41, 4")
    loop = k.label("loop")
    stamp(k, 1, opt)
    def substep(slot, u, fill):
        nslot, nu = (slot, 1) if u == 0 else ((slot + 1) % 4, 0)
        fi = 0
        for tt in range(12):
            if tt % 3 == 0: k("s_waitcnt lgkmcnt(15)")
            for i in range(2):
                if not opt.get("nomfma"):
                    k(f"v_mfma_f32_16x16x32_bf16 {vr(acc(tt,i),4)}, {ar(WF+tt*4,4)}, {ar(AR+slot*16+u*8+i*4,4)}, {vr(acc(tt,i),4)}")
                if tt > 0: k(rd(nslot, nu, tt - 1)[i])
                if (i == 1 or tt == 0) and fi < len(fill):
                    k(fill[fi]); fi += 1
        for x in rd(nslot, nu, 11): k(x)
        assert fi == len(fill), (fi, len(fill))
    substep(0, 0, [])
    k(".p2align 6")
    k(f"{loop}:")
    for s in range(4):
        ls = (s + 3) % 4
        k("s_waitcnt vmcnt(10)")
        k("s_barrier")
        n = nxt(); ld = loads(ls)
        head = ["\n".join(n[0:3]), "\n".join(n[3:5])]
        rest = n[5:]
        f1 = head + ld[:6] + ["\n".join(rest[:2])] + (["\n".join(rest[2:])] if rest[2:] else [])
        f2 = ld[6:] + (["s_sub_u32 s41, s41, 1\ns_cmp_lg_u32 s41, 0"] if s == 3 else [])
        def spread(L, nslots):
            out = [];
            for x in L: out.append(x)
            return out
        sp1 = [f1[0], f1[1]]
        for x in f1[2:]: sp1.append(x)
        substep(s, 1, sp1)
        sp2 = []
        for x in f2: sp2 += [x, "s_nop 0"] if opt.get("spread") else [x]
        substep((s + 1) % 4, 0, sp2[:13])
    k(f"s_cbranch_scc1 {loop}")
    stamp(k, 2, opt)
    if opt.get("noepi"):
        stamp(k, 3, opt); stamp_flush(k, 4, opt)
        k(f"{end}:\ns_endpgm")
        return k
    k("s_waitcnt vmcnt(0) lgkmcnt(0)")
    k("s_barrier")
    k("v_lshrrev_b32 v6, 2, v2")
    k("v_lshlrev_b32 v6, 6, v6")
    k("v_lshl_add_u32 v6, v14, 3, v6")
    k(f"v_add_u32 v6, {WPHI}, v6")
    for hh in range(2):
        for ft in range(2):
            b = (hh * 2 + ft) * 4
            k(f"ds_read_b64_tr_b16 {ar(b,2)}, v6 offset:{hh*2048+ft*32}")
            k(f"ds_read_b64_tr_b16 {ar(b+2,2)}, v6 offset:{hh*2048+ft*32+1024}")
    PKP, VP = 144, 80
    PKO, VO = 0, 36864
    k("v_and_b32 v7, 15, v2")
    k("s_lshl_b32 s15, s12, 5")
    k("v_add_u32 v7, s15, v7")
    k("v_lshrrev_b32 v5, 4, v2")
    k(f"v_mul_u32_u24 v8, {PKP}, v7")
    k("v_lshl_add_u32 v8, v5, 4, v8")
    k(f"v_mul_u32_u24 v9, {VP}, v7")
    k("v_lshl_add_u32 v9, v5, 3, v9")
    k(f"v_add_u32 v9, {VO}, v9")
    for hh in range(2):
        for i in range(2):
            for half in range(2):
                a = acc(8 + hh * 2 + half, i)
                t = 16 + ((hh * 2 + i) * 2 + half) * 2
                k(f"v_cvt_pk_bf16_f32 v{t}, v{a}, v{a+1}")
                k(f"v_cvt_pk_bf16_f32 v{t+1}, v{a+2}, v{a+3}")
                k(f"ds_write_b64 v9, {vr(t,2)} offset:{hh*10240 + i*16*VP + half*32}")
    def gidx(seg, hh, i): return (seg * 2 + hh) * 2 + i
    QF = 32
    for seg in (1, 0):
        for hh in range(2):
            for i in range(2):
                b = QF + gidx(seg, hh, i) * 4
                for half in range(2):
                    a = acc(seg * 4 + hh * 2 + half, i)
                    k(f"v_cvt_pk_bf16_f32 v{b+2*half}, v{a}, v{a+1}")
                    k(f"v_cvt_pk_bf16_f32 v{b+2*half+1}, v{a+2}, v{a+3}")
    k("s_waitcnt lgkmcnt(0)")
    k(f"s_lshl_b32 s15, s10, 18\ns_add_u32 s15, s15, {PHIQ_OFF}")
    k("s_add_u32 s32, s8, s15\ns_addc_u32 s33, s9, 0")
    srd(k, 56, "s32", "s33", 2 * 128 * 1024)
    k("s_lshl_b32 s15, s11, 3\ns_lshl_b32 s32, s12, 1\ns_add_u32 s15, s15, s32\ns_lshl_b32 s46, s15, 10\ns_add_u32 s47, s46, 0x20000")
    PT = 64
    for hh in range(2):
        for i in range(2):
            g = gidx(1, hh, i); j = hh * 2 + i
            for ft in range(2):
                k(f"v_mfma_f32_16x16x32_bf16 {vr(PT+j*8+ft*4,4)}, {ar((hh*2+ft)*4,4)}, {vr(QF+g*4,4)}, 0")
    for hh in range(2):
        for i in range(2):
            k(f"buffer_store_dwordx4 {vr(QF+gidx(0,hh,i)*4,4)}, v13, s[56:59], s{46+hh} offen offset:{i*1024}")
    k(f"s_mov_b32 s52, {LOG2E}\ns_mov_b32 s53, {LOG2E}\ns_mov_b32 s54, {NLOG2E}\ns_mov_b32 s55, {NLOG2E}")
    k("v_mov_b32 v28, 0x3f803f80\nv_mov_b32 v29, 0x3f803f80\nv_mov_b32 v30, 0x3f803f80\nv_mov_b32 v31, 0x3f803f80")
    k("v_lshrrev_b32 v6, 4, v2\nv_lshlrev_b32 v6, 3, v6\nv_bfe_u32 v7, v2, 2, 2\nv_add_u32 v6, v6, v7")
    k("s_lshr_b32 s15, s12, 1\ns_and_b32 s32, s12, 1")
    k(f"s_mul_i32 s33, s15, 18432\ns_lshl_b32 s34, s32, 6\ns_add_u32 s33, s33, s34")
    k(f"v_mul_u32_u24 v16, {PKP}, v6\nv_lshl_add_u32 v16, v14, 3, v16\nv_add_u32 v16, s33, v16")
    k(f"s_mul_i32 s33, s15, 10240\ns_add_u32 s33, s33, {VO}")
    k(f"v_mul_u32_u24 v17, {VP}, v6\nv_lshl_add_u32 v17, v14, 3, v17\nv_add_u32 v17, s33, v17")
    k(f"s_lshl_b32 s33, s11, 5\ns_lshl_b32 s34, s10, 1\ns_add_u32 s33, s33, s34\ns_add_u32 s33, s33, s15\ns_mul_i32 s33, s33, {KVP_STRIDE}")
    k(f"s_add_u32 s33, s33, {KVP_OFF}")
    k("s_add_u32 s34, s8, s33\ns_addc_u32 s35, s9, 0")
    srd(k, 48, "s34", "s35", KVP_STRIDE)
    k("v_and_b32 v18, 15, v2\nv_lshlrev_b32 v18, 8, v18\nv_lshl_add_u32 v18, v5, 4, v18")
    k("s_lshl_b32 s32, s32, 7")
    k("v_add_u32 v18, s32, v18")
    k("v_add_u32 v19, 4096, v18\nv_add_u32 v20, 8192, v18")
    from small import featmap
    PKD = 208
    def out(j, pm, e):
        hh, i = j >> 1, j & 1
        o = PKD + j * 8 + pm * 4
        for d in range(4): k(f"v_cvt_pk_bf16_f32 v{o+d}, v{e+2*d}, v{e+2*d+1}")
        k(f"ds_write_b128 v8, {vr(o,4)} offset:{PKO + hh*18432 + i*16*PKP + pm*64}")
    featmap(k, [0, 1, 2, 3], PT, 128, 160, 192, 240, out)
    k("s_waitcnt lgkmcnt(0)\ns_barrier")
    for ks in range(4):
        b = 16 + ks * 16
        for ft in range(2):
            for hf in range(2):
                k(f"ds_read_b64_tr_b16 {ar(b+ft*4+hf*2,2)}, v16 offset:{(32*ks+4*hf)*PKP + ft*32}")
        for dt in range(2):
            for hf in range(2):
                k(f"ds_read_b64_tr_b16 {ar(b+8+dt*4+hf*2,2)}, v17 offset:{(32*ks+4*hf)*VP + dt*32}")
    KV = 96
    for ks in range(4):
        b = 16 + ks * 16
        k(f"s_waitcnt lgkmcnt({min(15, 8*(3-ks))})")
        for ft in range(2):
            for dt in range(3):
                dst = ar(KV + (ft * 3 + dt) * 4, 4)
                bop = ar(b + 8 + dt * 4, 4) if dt < 2 else "v[28:31]"
                k(f"v_mfma_f32_16x16x32_bf16 {dst}, {ar(b+ft*4,4)}, {bop}, {dst if ks else 0}")
    k("s_nop 7")
    for ft in range(2):
        for dt in range(3):
            k(f"buffer_store_dwordx4 {ar(96+(ft*3+dt)*4,4)}, v{18+dt}, s[48:51], 0 offen offset:{ft*64}")
    if opt.get("stamp"): k("s_waitcnt vmcnt(0)")
    stamp(k, 3, opt); stamp_flush(k, 4, opt)
    k(f"{end}:\ns_endpgm")
    return k
```

```python
from kernels import *
MODP_OFF = 64 * 1024
QF_OFF = PHIQ_OFF
from qkv import KVP_STRIDE

def bf16r_pair(k, lo, hi):
    k(f"v_cvt_pk_bf16_f32 v{hi}, v{lo}, v{hi}")
    k(f"v_lshlrev_b32 v{lo}, 16, v{hi}")
    k(f"v_and_b32 v{hi}, 0xffff0000, v{hi}")
def bf16r(k, r):
    k(f"v_cvt_pk_bf16_f32 v{r}, v{r}, v{r}")
    k(f"v_and_b32 v{r}, 0xffff0000, v{r}")

def k_mod(name="mod_kernel", opt=None):
    opt = opt or {}
    k = K(name, 384, 256, 1024, 72, 48)
    end = k.label("end")
    k(f"s_cmp_ge_u32 s2, 384\ns_cbranch_scc1 {end}")
    k("s_load_dwordx4 s[4:7], s[0:1], 64")
    k("s_load_dwordx2 s[8:9], s[0:1], 96")
    k("s_lshr_b32 s10, s2, 2\ns_and_b32 s11, s2, 3")
    k("v_and_b32 v1, 7, v0\nv_lshrrev_b32 v2, 3, v0")
    k("v_lshlrev_b32 v3, 4, v2")
    k(f"v_mul_u32_u24 v4, {8*12288}, v2")
    k("v_lshl_add_u32 v4, v1, 4, v4")
    k("s_waitcnt lgkmcnt(0)")
    k("s_lshl_b32 s12, s11, 9")
    k("s_add_u32 s14, s4, s12\ns_addc_u32 s15, s5, 0")
    srd(k, 16, "s14", "s15", 512)
    k(f"s_mul_i32 s12, s11, {256*12288}\ns_lshl_b32 s13, s10, 7\ns_add_u32 s12, s12, s13")
    k(f"s_add_u32 s14, s6, s12\ns_addc_u32 s15, s7, 0\ns_sub_u32 s13, {1024*12288}, s12")
    srd(k, 20, "s14", "s15", "s13")
    k("buffer_load_dwordx4 v[8:11], v3, s[16:19], 0 offen")
    for i in range(8):
        k(f"s_mov_b32 s28, {i*12288}")
        k(f"buffer_load_dwordx4 {vr(32+4*i,4)}, v4, s[20:23], s28 offen")
    k(f"s_mul_i32 s12, s11, 24576\ns_lshl_b32 s13, s10, 8\ns_add_u32 s12, s12, s13\ns_add_u32 s12, s12, {MODP_OFF}")
    k("s_add_u32 s14, s8, s12\ns_addc_u32 s15, s9, 0")
    srd(k, 24, "s14", "s15", 256)
    k(f"s_mov_b32 s29, {NLOG2E}")
    k("s_waitcnt vmcnt(8)")
    S = 12
    for d in range(4):
        k(f"v_lshlrev_b32 v{S+2*d}, 16, v{8+d}")
        k(f"v_and_b32 v{S+2*d+1}, 0xffff0000, v{8+d}")
    for i in range(8): k(f"v_mul_f32 v{20+i}, s29, v{S+i}")
    for i in range(8): k(f"v_exp_f32 v{20+i}, v{20+i}")
    for i in range(8): k(f"v_add_f32 v{20+i}, 1.0, v{20+i}")
    for i in range(8): k(f"v_rcp_f32 v{20+i}, v{20+i}")
    for i in range(8): k(f"v_mul_f32 v{S+i}, v{S+i}, v{20+i}")
    for d in range(4): bf16r_pair(k, S + 2 * d, S + 2 * d + 1)
    A = 64
    for i in range(8):
        k(f"s_waitcnt vmcnt({7-i})")
        for d in range(4):
            w = 32 + 4 * i + d
            k(f"v_lshlrev_b32 v{20+2*d}, 16, v{w}")
            k(f"v_and_b32 v{21+2*d}, 0xffff0000, v{w}")
        for j in range(8):
            if i == 0: k(f"v_mul_f32 v{A+j}, v{20+j}, v{S}")
            else: k(f"v_fmac_f32 v{A+j}, v{20+j}, v{S+i}")
    k("s_nop 1")
    for j in range(4): k(f"v_permlane32_swap_b32 v{A+j}, v{A+4+j}")
    for j in range(4): k(f"v_add_f32 v{A+j}, v{A+j}, v{A+4+j}")
    k("s_nop 1")
    for j in range(2): k(f"v_permlane16_swap_b32 v{A+j}, v{A+2+j}")
    for j in range(2): k(f"v_add_f32 v{A+j}, v{A+j}, v{A+2+j}")
    k("s_nop 1")
    for j in range(2): k(f"v_add_f32_dpp v{A+2+j}, v{A+j}, v{A+j} row_ror:8 row_mask:0xf bank_mask:0xf")
    k("v_bfe_u32 v5, v0, 4, 2")
    k("v_lshlrev_b32 v5, 3, v5")
    k("v_lshl_add_u32 v5, v1, 5, v5")
    k("v_lshrrev_b32 v6, 6, v0")
    k("v_lshl_add_u32 v5, v6, 8, v5")
    k(f"ds_write_b64 v5, v[{A+2}:{A+3}]")
    k("v_lshlrev_b32 v7, 2, v0")
    k("s_waitcnt lgkmcnt(0)\ns_barrier")
    k("v_cmp_gt_u32 vcc, 64, v0")
    k("s_and_saveexec_b64 s[30:31], vcc")
    k(f"s_cbranch_execz {end}")
    for w in range(4): k(f"ds_read_b32 v{20+w}, v7 offset:{256*w}")
    k("s_waitcnt lgkmcnt(0)")
    k("v_add_f32 v20, v20, v21\nv_add_f32 v22, v22, v23\nv_add_f32 v20, v20, v22")
    k("buffer_store_dword v20, v7, s[24:27], 0 offen")
    k(f"{end}:\ns_endpgm")
    return k

def k_ln(name, first, opt=None):
    opt = opt or {}
    k = K(name, 256, 512, 8192 + 512, 96, 64)
    end = k.label("end")
    k(f"s_cmp_ge_u32 s2, 256\ns_cbranch_scc1 {end}")
    k("s_load_dwordx2 s[8:9], s[0:1], 96")
    if first: k("s_load_dwordx2 s[4:5], s[0:1], 0")
    k("v_lshrrev_b32 v1, 6, v0")
    k("v_and_b32 v2, 63, v0")
    k("v_readfirstlane_b32 s12, v1")
    k("v_and_b32 v3, 7, v0")
    k("v_lshrrev_b32 v4, 3, v2")
    k("s_and_b32 s10, s2, 7\ns_lshl_b32 s10, s10, 5\ns_lshr_b32 s11, s2, 3\ns_add_u32 s10, s10, s11")
    k("v_lshlrev_b32 v5, 11, v3")
    k("v_lshl_add_u32 v5, v4, 4, v5")
    k("s_lshl_b32 s13, s12, 8")
    k("v_add_u32 v5, s13, v5")
    k("v_lshlrev_b32 v6, 4, v0")
    k("s_waitcnt lgkmcnt(0)")
    k("s_lshl_b32 s13, s10, 14")
    if first: k("s_add_u32 s14, s4, s13\ns_addc_u32 s15, s5, 0")
    else: k(f"s_add_u32 s14, s8, s13\ns_addc_u32 s15, s9, 0\ns_add_u32 s14, s14, {X1_OFF}\ns_addc_u32 s15, s15, 0")
    srd(k, 16, "s14", "s15", 16384)
    k("buffer_load_dwordx4 v[8:11], v5, s[16:19], 0 offen")
    k("buffer_load_dwordx4 v[12:15], v5, s[16:19], 0 offen offset:128")
    if first:
        k(f"s_add_u32 s14, s8, {MODP_OFF}\ns_addc_u32 s15, s9, 0")
        srd(k, 20, "s14", "s15", 4 * 24576)
        for p in range(4):
            k(f"s_mov_b32 s28, {p*24576}")
            k(f"buffer_load_dwordx4 {vr(16+4*p,4)}, v6, s[20:23], s28 offen")
        nm = 4
    else:
        k(f"s_add_u32 s14, s8, {MOD_OFF + 3*4096}\ns_addc_u32 s15, s9, 0")
        srd(k, 20, "s14", "s15", 8192)
        k("buffer_load_dwordx4 v[16:19], v6, s[20:23], 0 offen")
        nm = 1
    k(f"s_add_u32 s14, s8, {H1_OFF if first else H2_OFF}\ns_addc_u32 s15, s9, 0")
    srd(k, 24, "s14", "s15", 4 * MB)
    k("v_lshrrev_b32 v7, 2, v4\nv_lshlrev_b32 v7, 17, v7")
    k("v_and_b32 v32, 3, v4\nv_lshl_add_u32 v7, v32, 8, v7\nv_lshl_add_u32 v7, v3, 4, v7")
    k("s_lshl_b32 s13, s12, 19\ns_lshr_b32 s14, s10, 1\ns_lshl_b32 s14, s14, 10\ns_add_u32 s13, s13, s14")
    k("s_and_b32 s14, s10, 1\ns_lshl_b32 s14, s14, 7\ns_add_u32 s30, s13, s14\ns_add_u32 s31, s30, 0x40000")
    X = 40
    k(f"s_waitcnt vmcnt({nm})")
    for d in range(8):
        k(f"v_lshlrev_b32 v{X+2*d}, 16, v{8+d}")
        k(f"v_and_b32 v{X+2*d+1}, 0xffff0000, v{8+d}")
    T = 56
    def xreduce(r, t):
        k("s_nop 1")
        k(f"v_add_f32_dpp v{r}, v{r}, v{r} row_ror:8 row_mask:0xf bank_mask:0xf")
        k(f"v_mov_b32 v{t}, v{r}\ns_nop 1\nv_permlane16_swap_b32 v{r}, v{t}\nv_add_f32 v{r}, v{r}, v{t}")
        k(f"v_mov_b32 v{t}, v{r}\ns_nop 1\nv_permlane32_swap_b32 v{r}, v{t}\nv_add_f32 v{r}, v{r}, v{t}")
    for d in range(4): k(f"v_pk_add_f32 {vr(T+2*d,2)}, {vr(X+4*d,2)}, {vr(X+4*d+2,2)}")
    k(f"v_pk_add_f32 {vr(T,2)}, {vr(T,2)}, {vr(T+2,2)}\nv_pk_add_f32 {vr(T+4,2)}, {vr(T+4,2)}, {vr(T+6,2)}")
    k(f"v_pk_add_f32 {vr(T,2)}, {vr(T,2)}, {vr(T+4,2)}")
    k(f"v_add_f32 v34, v{T}, v{T+1}")
    xreduce(34, 33)
    k("v_mul_f32 v34, 0x3c000000, v34")
    for d in range(8): k(f"v_pk_add_f32 {vr(T+2*d,2)}, {vr(X+2*d,2)}, v[34:35] op_sel_hi:[1,0] neg_lo:[0,1] neg_hi:[0,1]")
    k(f"v_pk_mul_f32 v[36:37], {vr(T,2)}, {vr(T,2)}")
    for d in range(1, 8): k(f"v_pk_fma_f32 v[36:37], {vr(T+2*d,2)}, {vr(T+2*d,2)}, v[36:37]")
    k("v_add_f32 v35, v36, v37")
    xreduce(35, 33)
    k("v_lshlrev_b32 v33, 6, v3")
    k("s_lshl_b32 s13, s12, 3\ns_add_u32 s13, s13, 8192")
    k("v_add_u32 v38, s13, v33")
    k("ds_write_b64 v38, v[34:35]")
    k("s_waitcnt vmcnt(0)")
    if first:
        k("v_pk_add_f32 v[16:17], v[16:17], v[20:21]\nv_pk_add_f32 v[18:19], v[18:19], v[22:23]")
        k("v_pk_add_f32 v[24:25], v[24:25], v[28:29]\nv_pk_add_f32 v[26:27], v[26:27], v[30:31]")
        k("v_pk_add_f32 v[16:17], v[16:17], v[24:25]\nv_pk_add_f32 v[18:19], v[18:19], v[26:27]")
        bf16r_pair(k, 16, 17); bf16r_pair(k, 18, 19)
        k("s_cmp_ge_u32 s12, 4\ns_cselect_b32 s13, 1.0, 0")
        for j in range(4): k(f"v_add_f32 v{16+j}, s13, v{16+j}")
        bf16r_pair(k, 16, 17); bf16r_pair(k, 18, 19)
    k("ds_write_b128 v6, v[16:19]")
    if first:
        fin = k.label("fin")
        k(f"s_cmp_ge_u32 s2, 2\ns_cbranch_scc1 {fin}")
        k("s_lshl_b32 s13, s2, 13\ns_add_u32 s13, s13, 8192")
        k("v_add_u32 v39, s13, v6")
        for p in range(4):
            k(f"s_mov_b32 s28, {p*24576}")
            k(f"buffer_load_dwordx4 {vr(72+4*p,4)}, v39, s[20:23], s28 offen")
        k(f"s_add_u32 s14, s8, {MOD_OFF}\ns_addc_u32 s15, s9, 0")
        srd(k, 32, "s14", "s15", 24576)
        k("s_waitcnt vmcnt(0)")
        k("v_pk_add_f32 v[72:73], v[72:73], v[76:77]\nv_pk_add_f32 v[74:75], v[74:75], v[78:79]")
        k("v_pk_add_f32 v[80:81], v[80:81], v[84:85]\nv_pk_add_f32 v[82:83], v[82:83], v[86:87]")
        k("v_pk_add_f32 v[72:73], v[72:73], v[80:81]\nv_pk_add_f32 v[74:75], v[74:75], v[82:83]")
        bf16r_pair(k, 72, 73); bf16r_pair(k, 74, 75)
        k("s_lshl_b32 s13, s2, 3\ns_add_u32 s13, s13, s12\ns_lshr_b32 s13, s13, 2\ns_cmp_eq_u32 s13, 2\ns_cselect_b32 s13, 1.0, 0")
        for j in range(4): k(f"v_add_f32 v{72+j}, s13, v{72+j}")
        bf16r_pair(k, 72, 73); bf16r_pair(k, 74, 75)
        k("buffer_store_dwordx4 v[72:75], v39, s[32:35], 0 offen")
        k(f"{fin}:")
    k("s_waitcnt lgkmcnt(0)\ns_barrier")
    k("v_add_u32 v33, 8192, v33")
    for j in range(4): k(f"ds_read_b128 {vr(T+4*j,4)}, v33 offset:{16*j}")
    k("v_lshlrev_b32 v38, 5, v4")
    k("s_lshl_b32 s13, s12, 9")
    k("v_add_u32 v38, s13, v38")
    SH, SC = 8, 72
    for j in range(2):
        for h in range(2):
            k(f"ds_read_b128 {vr(SH+8*j+4*h,4)}, v38 offset:{256*j+16*h}")
            k(f"ds_read_b128 {vr(SC+8*j+4*h,4)}, v38 offset:{4096+256*j+16*h}")
    k("s_waitcnt lgkmcnt(8)")
    k(f"v_pk_add_f32 v[24:25], {vr(T,2)}, {vr(T+2,2)}\nv_pk_add_f32 v[26:27], {vr(T+4,2)}, {vr(T+6,2)}")
    k(f"v_pk_add_f32 v[28:29], {vr(T+8,2)}, {vr(T+10,2)}\nv_pk_add_f32 v[30:31], {vr(T+12,2)}, {vr(T+14,2)}")
    k("v_pk_add_f32 v[24:25], v[24:25], v[26:27]\nv_pk_add_f32 v[28:29], v[28:29], v[30:31]\nv_pk_add_f32 v[24:25], v[24:25], v[28:29]")
    k("v_mul_f32 v24, 0x3e000000, v24")
    k("v_mov_b32 v26, 0")
    for w in range(8):
        k(f"v_sub_f32 v27, v{T+2*w}, v24")
        k("v_fmac_f32 v26, v27, v27")
    k("v_fmac_f32 v25, 0x43000000, v26")
    k("v_mul_f32 v25, 0x3a800000, v25")
    bf16r_pair(k, 24, 25)
    k("v_add_f32 v25, 0x3727c5ac, v25")
    bf16r(k, 25)
    k("v_sqrt_f32 v25, v25\ns_nop 0")
    bf16r(k, 25)
    k("v_rcp_f32 v26, v25")
    k("s_waitcnt lgkmcnt(0)")
    for d in range(8): k(f"v_pk_add_f32 {vr(X+2*d,2)}, {vr(X+2*d,2)}, v[24:25] op_sel_hi:[1,0] neg_lo:[0,1] neg_hi:[0,1]")
    for d in range(8): bf16r_pair(k, X + 2 * d, X + 2 * d + 1)
    for d in range(8): k(f"v_pk_mul_f32 {vr(X+2*d,2)}, {vr(X+2*d,2)}, v[26:27] op_sel_hi:[1,0]")
    for d in range(8): bf16r_pair(k, X + 2 * d, X + 2 * d + 1)
    for d in range(8): k(f"v_pk_mul_f32 {vr(X+2*d,2)}, {vr(X+2*d,2)}, {vr(SC+2*d,2)}")
    for d in range(8): bf16r_pair(k, X + 2 * d, X + 2 * d + 1)
    for d in range(8): k(f"v_pk_add_f32 {vr(X+2*d,2)}, {vr(X+2*d,2)}, {vr(SH+2*d,2)}")
    for d in range(8): k(f"v_cvt_pk_bf16_f32 v{T+d}, v{X+2*d}, v{X+2*d+1}")
    k(f"buffer_store_dwordx4 {vr(T,4)}, v7, s[24:27], s30 offen")
    k(f"buffer_store_dwordx4 {vr(T+4,4)}, v7, s[24:27], s31 offen")
    k(f"{end}:\ns_endpgm")
    return k

def featmap(k, G, PT, EP, EM, ST, SM, emit_out):
    n = len(G)
    for g in G:
        p = PT + g * 8
        for d in range(4): k(f"v_cvt_pk_bf16_f32 v{p+2*d+1}, v{p+2*d}, v{p+2*d+1}")
        for d in range(4):
            k(f"v_lshlrev_b32 v{p+2*d}, 16, v{p+2*d+1}")
            k(f"v_and_b32 v{p+2*d+1}, 0xffff0000, v{p+2*d+1}")
    X = lambda j: ST + 4 * j
    Y = lambda j: ST + 4 * j + 2
    for j, g in enumerate(G):
        p = PT + g * 8; t = X(j) + 1; t2 = Y(j) + 1
        k(f"v_max3_f32 v{X(j)}, v{p}, v{p+1}, v{p+2}")
        k(f"v_max3_f32 v{t}, v{p+3}, v{p+4}, v{p+5}")
        k(f"v_max3_f32 v{Y(j)}, -v{p}, -v{p+1}, -v{p+2}")
        k(f"v_max3_f32 v{t2}, -v{p+3}, -v{p+4}, -v{p+5}")
        k(f"v_max3_f32 v{X(j)}, v{X(j)}, v{p+6}, v{p+7}")
        k(f"v_max3_f32 v{Y(j)}, v{Y(j)}, -v{p+6}, -v{p+7}")
        k(f"v_max_f32 v{X(j)}, v{X(j)}, v{t}")
        k(f"v_max_f32 v{Y(j)}, v{Y(j)}, v{t2}")
    def allred(op, post):
        k("s_nop 1")
        for j in range(n): k(f"v_permlane16_swap_b32 v{X(j)}, v{Y(j)}")
        for j in range(n): k(f"{op} v{X(j)}, v{X(j)}, v{Y(j)}")
        for j in range(n): k(f"v_mov_b32 v{Y(j)}, v{X(j)}")
        k("s_nop 1")
        for j in range(n): k(f"v_permlane32_swap_b32 v{X(j)}, v{Y(j)}")
        for j in range(n): k(f"{op} v{X(j)}, v{X(j)}, v{Y(j)}")
        for j in range(n): k(post(X(j)))
        k("s_nop 0")
        for j in range(n): k(f"v_mov_b32 v{Y(j)}, v{X(j)}")
        k("s_nop 1")
        for j in range(n): k(f"v_permlane16_swap_b32 v{X(j)}, v{Y(j)}")
    allred("v_max_f32", lambda r: f"v_mul_f32 v{r}, s54, v{r}")
    for j, g in enumerate(G):
        p = PT + g * 8
        for d in range(4):
            k(f"v_pk_fma_f32 {vr(EP+j*8+2*d,2)}, {vr(p+2*d,2)}, s[52:53], {vr(X(j),2)} op_sel_hi:[1,1,0]")
            k(f"v_pk_fma_f32 {vr(EM+j*8+2*d,2)}, {vr(p+2*d,2)}, s[54:55], {vr(Y(j),2)} op_sel_hi:[1,1,0]")
        for d in range(8):
            k(f"v_exp_f32 v{EP+j*8+d}, v{EP+j*8+d}")
            k(f"v_exp_f32 v{EM+j*8+d}, v{EM+j*8+d}")
    k("s_nop 0")
    for j in range(n):
        for q, (E, R) in enumerate(((EP, X(j)), (EM, Y(j)))):
            e = E + j * 8; t = SM + 4 * q
            k(f"v_pk_add_f32 {vr(t,2)}, {vr(e,2)}, {vr(e+2,2)}")
            k(f"v_pk_add_f32 {vr(t+2,2)}, {vr(e+4,2)}, {vr(e+6,2)}")
        for q, (E, R) in enumerate(((EP, X(j)), (EM, Y(j)))):
            t = SM + 4 * q
            k(f"v_pk_add_f32 {vr(t,2)}, {vr(t,2)}, {vr(t+2,2)}")
        for q, (E, R) in enumerate(((EP, X(j)), (EM, Y(j)))):
            t = SM + 4 * q
            k(f"v_add_f32 v{R}, v{t}, v{t+1}")
    allred("v_add_f32", lambda r: f"v_rcp_f32 v{r}, v{r}")
    for j in range(n):
        for pm, (E, R) in enumerate(((EP, X(j)), (EM, Y(j)))):
            e = E + j * 8
            for d in range(4): k(f"v_pk_mul_f32 {vr(e+2*d,2)}, {vr(e+2*d,2)}, {vr(R,2)} op_sel_hi:[1,0]")
            emit_out(j, pm, e)

def k_attn(name="attn_kernel", opt=None):
    opt = opt or {}
    KVT = 16384; KP = 144
    k = K(name, 256, 512, KVT + 33 * KP, 128, 80)
    end = k.label("end")
    k(f"s_cmp_ge_u32 s2, 256\ns_cbranch_scc1 {end}")
    stamp(k, 0, opt)
    k("s_load_dwordx2 s[4:5], s[0:1], 16")
    k("s_load_dwordx2 s[8:9], s[0:1], 96")
    k("v_lshrrev_b32 v1, 6, v0")
    k("v_and_b32 v2, 63, v0")
    k("v_readfirstlane_b32 s12, v1")
    if opt.get("map", "head") == "row":
        k("s_and_b32 s11, s2, 7\ns_lshr_b32 s10, s2, 3")
    else:
        k("s_and_b32 s10, s2, 31\ns_lshr_b32 s11, s2, 5")
    k("v_lshlrev_b32 v3, 4, v2")
    k("v_lshlrev_b32 v4, 4, v0")
    k("s_waitcnt lgkmcnt(0)")
    k("s_lshl_b32 s13, s10, 11")
    k("s_add_u32 s14, s4, s13\ns_addc_u32 s15, s5, 0")
    srd(k, 16, "s14", "s15", 2048)
    k("s_lshl_b32 s13, s12, 11\ns_mov_b32 m0, s13")
    k("s_lshl_b32 s13, s10, 17\ns_lshl_b32 s14, s11, 14\ns_add_u32 s13, s13, s14\ns_lshl_b32 s14, s12, 11\ns_add_u32 s36, s13, s14")
    k("buffer_load_dwordx4 v3, s[16:19], 0 offen lds")
    k("buffer_load_dwordx4 v3, s[16:19], 0 offen offset:1024 lds")
    k(f"s_add_u32 s14, s8, {QF_OFF}\ns_addc_u32 s15, s9, 0")
    srd(k, 20, "s14", "s15", 4 * MB)
    k("buffer_load_dwordx4 v[8:11], v3, s[20:23], s36 offen")
    k("buffer_load_dwordx4 v[12:15], v3, s[20:23], s36 offen offset:1024")
    k(f"s_mul_i32 s13, s10, {KVP_STRIDE}\ns_add_u32 s13, s13, {KVP_OFF}")
    k("s_add_u32 s14, s8, s13\ns_addc_u32 s15, s9, 0")
    srd(k, 24, "s14", "s15", 15 * 32 * KVP_STRIDE + KVP_STRIDE)
    PR = 64
    k("s_lshl_b32 s13, s11, 1")
    for p in range(16):
        k(f"s_add_u32 s14, s13, {p}\ns_and_b32 s14, s14, 15\ns_mul_i32 s14, s14, {32*KVP_STRIDE}")
        k(f"buffer_load_dwordx4 {vr(PR+4*p,4)}, v4, s[24:27], s14 offen")
    k(f"s_add_u32 s14, s8, {O_OFF}\ns_addc_u32 s15, s9, 0")
    srd(k, 28, "s14", "s15", 4 * MB)
    k(f"s_mov_b32 s52, {LOG2E}\ns_mov_b32 s53, {LOG2E}\ns_mov_b32 s54, {NLOG2E}\ns_mov_b32 s55, {NLOG2E}")
    k("v_lshrrev_b32 v5, 2, v2\nv_lshlrev_b32 v5, 6, v5\nv_and_b32 v6, 3, v2\nv_lshl_add_u32 v5, v6, 3, v5")
    k("s_lshl_b32 s13, s12, 11")
    k("v_add_u32 v5, s13, v5")
    k("s_waitcnt vmcnt(16)")
    for ft in range(2):
        k(f"ds_read_b64_tr_b16 {vr(16+4*ft,2)}, v5 offset:{ft*32}")
        k(f"ds_read_b64_tr_b16 {vr(18+4*ft,2)}, v5 offset:{ft*32+1024}")
    k("s_waitcnt lgkmcnt(0)")
    PT = 24
    for i in range(2):
        for ft in range(2):
            k(f"v_mfma_f32_16x16x32_bf16 {vr(PT+i*8+ft*4,4)}, {vr(16+4*ft,4)}, {vr(8+4*i,4)}, 0")
    k("s_nop 7")
    stamp(k, 1, opt)
    PH = 24
    def out(j, pm, e):
        for d in range(4): k(f"v_cvt_pk_bf16_f32 v{PH+j*8+pm*4+d}, v{e+2*d}, v{e+2*d+1}")
    featmap(k, [0, 1], PT, 40, 8, 56, PT, out)
    stamp(k, 2, opt)
    noz = k.label("noz")
    k(f"s_cmp_lg_u32 s12, 0\ns_cbranch_scc1 {noz}")
    k("v_lshrrev_b32 v6, 4, v2")
    k(f"v_mul_u32_u24 v6, {32*KVP_STRIDE}, v6")
    k("v_and_b32 v7, 15, v2\nv_lshl_add_u32 v6, v7, 4, v6\nv_add_u32 v6, 8192, v6")
    for j in range(4):
        k(f"s_mov_b32 s14, {4*j*32*KVP_STRIDE}")
        k(f"buffer_load_dwordx4 {vr(8+4*j,4)}, v6, s[24:27], s14 offen")
    k("s_waitcnt vmcnt(0)")
    k("v_pk_add_f32 v[8:9], v[8:9], v[12:13]\nv_pk_add_f32 v[10:11], v[10:11], v[14:15]")
    k("v_pk_add_f32 v[16:17], v[16:17], v[20:21]\nv_pk_add_f32 v[18:19], v[18:19], v[22:23]")
    k("v_pk_add_f32 v[8:9], v[8:9], v[16:17]\nv_pk_add_f32 v[10:11], v[10:11], v[18:19]")
    for sw in ("v_permlane16_swap_b32", "v_permlane32_swap_b32"):
        for j in range(4): k(f"v_mov_b32 v{12+j}, v{8+j}")
        k("s_nop 1")
        for j in range(4): k(f"{sw} v{8+j}, v{12+j}")
        for j in range(4): k(f"v_add_f32 v{8+j}, v{8+j}, v{12+j}")
    k("v_cvt_pk_bf16_f32 v8, v8, v9\nv_cvt_pk_bf16_f32 v9, v10, v11")
    k(f"v_lshlrev_b32 v7, 3, v7\nv_add_u32 v7, {KVT + 32*KP}, v7")
    k("ds_write_b64 v7, v[8:9]")
    k(f"{noz}:")
    for p in range(1, 16):
        k(f"s_waitcnt vmcnt({15-p})")
        k(f"v_pk_add_f32 {vr(PR,2)}, {vr(PR,2)}, {vr(PR+4*p,2)}")
        k(f"v_pk_add_f32 {vr(PR+2,2)}, {vr(PR+2,2)}, {vr(PR+4*p+2,2)}")
    k(f"v_cvt_pk_bf16_f32 v{PR}, v{PR}, v{PR+1}\nv_cvt_pk_bf16_f32 v{PR+1}, v{PR+2}, v{PR+3}")
    k(f"v_lshrrev_b32 v6, 4, v0\nv_mul_u32_u24 v6, {KP}, v6\nv_and_b32 v7, 15, v0\nv_lshl_add_u32 v6, v7, 3, v6")
    k(f"ds_write_b64 v6, {vr(PR,2)} offset:{KVT}")
    k(f"v_mul_u32_u24 v6, {KP}, v7\nv_lshrrev_b32 v5, 4, v2\nv_lshlrev_b32 v5, 4, v5\nv_add_u32 v6, v6, v5")
    k("s_waitcnt lgkmcnt(0)\ns_barrier")
    KF = 64
    for dt in range(3):
        for pm in range(2):
            if dt < 2: k(f"ds_read_b128 {vr(KF+(dt*2+pm)*4,4)}, v6 offset:{KVT + dt*16*KP + pm*64}")
            else: k(f"ds_read_b128 {vr(KF+(dt*2+pm)*4,4)}, v5 offset:{KVT + 32*KP + pm*64}")
    k("s_waitcnt lgkmcnt(0)")
    OA = 96
    for pm in range(2):
        for i in range(2):
            for dt in range(3):
                d_ = vr(OA + (i * 3 + dt) * 4, 4)
                k(f"v_mfma_f32_16x16x32_bf16 {d_}, {vr(KF+(dt*2+pm)*4,4)}, {vr(PH+i*8+pm*4,4)}, {d_ if pm else 0}")
    k("s_nop 7")
    for i in range(2):
        den = OA + (i * 3 + 2) * 4
        k(f"v_add_f32 v{den}, 0x358637bd, v{den}")
    for i in range(2):
        den = OA + (i * 3 + 2) * 4
        k(f"v_rcp_f32 v{den}, v{den}")
    k("s_nop 0")
    for i in range(2):
        den = OA + (i * 3 + 2) * 4; o = OA + i * 12
        for d in range(4): k(f"v_pk_mul_f32 {vr(o+2*d,2)}, {vr(o+2*d,2)}, {vr(den,2)} op_sel_hi:[1,0]")
        for d in range(4): k(f"v_cvt_pk_bf16_f32 v{8+4*i+d}, v{o+2*d}, v{o+2*d+1}")
        k(f"buffer_store_dwordx4 {vr(8+4*i,4)}, v3, s[28:31], s36 offen offset:{1024*i}")
    if opt.get("stamp"): k("s_waitcnt vmcnt(0)")
    stamp(k, 3, opt); stamp_flush(k, 4, opt)
    k(f"{end}:\ns_endpgm")
    return k
```

```python
import sys
from qkv import *
from small import *
from proj import *
from ffn1c import *
NAME = "adaLN_cond__linear_kernel_hedgehog__glu_gated_swiglu__prompt"
def build(path, stamps=False):
    o = {"stamp": 1} if stamps else {}
    ks = [k_mod("mod_kernel"), k_ln("ln1_kernel", True), k_qkv("qkv_kernel", dict(o)), k_attn("attn_kernel", dict(o)),
          k_proj("wo_kernel", 32, O_OFF, 24, None, 2, X1_OFF, dict(o, WS=4, map="4x8")), k_ln("ln2_kernel", False),
          k_ffn1c("ffn1_kernel", dict(o, WS=4)), k_proj("ffn2_kernel", 112, HH_OFF, 56, X1_OFF, 5, None, dict(o, WS=4))]
    hdr = open(f"cdna_kernels/{NAME}.s.ref").read().split("; Override launch")[0]
    emit_file(path, ks, header=hdr)
if __name__ == "__main__":
    build(f"cdna_kernels/{NAME}.s")
```

```python
from asmlib import *
MB = 1 << 20
FLG_OFF = 0
MODP_OFF = 64 * 1024
MODR_OFF = 192 * 1024
STAT_OFF = 512 * 1024
H1_OFF = 1 * MB
O_OFF = 5 * MB
X1_OFF = 9 * MB
H2_OFF = 13 * MB
KVP_OFF = 17 * MB
HH_OFF = 32 * MB
STAMP_OFF = 200 * MB
KVS = 4352
NLOG2E = 0xBFB8AA3B; LOG2E = 0x3FB8AA3B
SENT = 0xBF800000
C_S0, C_S1, C_S2, C_S3, C_S5, C_S6 = 0, 16, 32, 48, 64, 72
NCNT = 80
P_X, P_WQKV, P_WPHI, P_WO, P_BX, P_W1, P_W3, P_W2, P_C, P_WMOD, P_OUT, P_DBG = [64 + 2 * i for i in range(12)]
PERS = 152 * 1024

def srd(k, d, lo, hi, nrec):
    k(f"s_mov_b32 s{d}, {lo}")
    k(f"s_and_b32 s{d+1}, {hi}, 0xffff")
    k(f"s_mov_b32 s{d+2}, {nrec}")
    k(f"s_mov_b32 s{d+3}, 0x20000")
def srd_off(k, d, base, off, nrec):
    k(f"s_add_u32 s{d}, s{base}, {off}")
    k(f"s_addc_u32 s{d+1}, s{base+1}, 0")
    k(f"s_and_b32 s{d+1}, s{d+1}, 0xffff")
    k(f"s_mov_b32 s{d+2}, {nrec}")
    k(f"s_mov_b32 s{d+3}, 0x20000")
def bf16r_pair(k, lo, hi):
    k(f"v_cvt_pk_bf16_f32 v{hi}, v{lo}, v{hi}")
    k(f"v_lshlrev_b32 v{lo}, 16, v{hi}")
    k(f"v_and_b32 v{hi}, 0xffff0000, v{hi}")
def bf16r(k, r):
    k(f"v_cvt_pk_bf16_f32 v{r}, v{r}, v{r}")
    k(f"v_and_b32 v{r}, 0xffff0000, v{r}")
def unpack(k, lo, hi, src):
    k(f"v_lshlrev_b32 v{lo}, 16, v{src}")
    k(f"v_and_b32 v{hi}, 0xffff0000, v{src}")

import re as _re
def _regs(tok):
    m = _re.fullmatch(r"-?v\[(\d+):(\d+)\]", tok)
    if m: return set(range(int(m.group(1)), int(m.group(2)) + 1))
    m = _re.fullmatch(r"-?v(\d+)", tok)
    return {int(m.group(1))} if m else set()
def check_mfma_valu(L):
    last = {}; pos = 0; ltr = {}
    for x in L:
        op, _, rest = x.partition(" ")
        toks = [t.strip() for t in _re.split(r"[, ]+", rest) if t.strip()]
        if op.startswith("v_mfma"):
            for r in _regs(toks[0]): last[r] = pos
        else:
            allr = set().union(*[_regs(t) for t in toks]) if toks else set()
            for r in allr:
                assert r not in last or pos - last[r] - 1 >= 8, (x, r, pos - last[r] - 1)
            tr = op.startswith(("v_exp", "v_rcp", "v_sqrt"))
            if not tr:
                for r in set().union(*[_regs(t) for t in toks[1:]]) if len(toks) > 1 else set():
                    assert r not in ltr or pos - ltr[r] - 1 >= 1, (x, r)
            if tr:
                for r in _regs(toks[0]): ltr[r] = pos
        pos += (int(rest) + 1) if op == "s_nop" else 1

class M:
    def __init__(self, name, opt):
        self.opt = opt
        self.k = K(name, 256, 256, 160 * 1024, 512, 102, accum=256)
        self.nst = 0
        self.LD = opt.get("ld", " sc1")
        self.end = self.k.label("end")
    def stamp(self, label=""):
        if not self.opt.get("stamp"): return
        k = self.k
        k("s_memrealtime s[90:91]\ns_memtime s[100:101]\ns_waitcnt lgkmcnt(0)")
        k(f"v_writelane_b32 v31, s90, {self.nst}")
        k(f"v_writelane_b32 v30, s100, {self.nst}")
        self.opt.setdefault("labels", []).append(label)
        self.nst += 1
    def finish(self):
        k = self.k
        if self.opt.get("stamp"):
            k("s_waitcnt vmcnt(0)")
            self.stamp("end")
            srd_off(k, 8, 4, STAMP_OFF, 1 << 20)
            k("s_lshl_b32 s12, s2, 2\ns_add_u32 s12, s12, s3\ns_lshl_b32 s12, s12, 8")
            k("v_lshlrev_b32 v3, 2, v1")
            k("buffer_store_dword v31, v3, s[8:11], s12 offen")
            k("s_add_u32 s12, s12, 0x40000")
            k("buffer_store_dword v30, v3, s[8:11], s12 offen")
        k(f"{self.end}:\ns_endpgm")
        return k
    def arrive(self, cnt_s, pre="s_waitcnt vmcnt(0) lgkmcnt(0)", barrier=True):
        k = self.k
        k(pre)
        if barrier: k("s_barrier")
        sk = k.label("arr")
        k(f"s_cmp_lg_u32 s3, 0\ns_cbranch_scc1 {sk}")
        k(f"s_lshl_b32 s96, {cnt_s}, 8")
        k("v_mov_b32 v28, 1\nv_mov_b32 v29, 0")
        k("s_mov_b64 exec, 1")
        k("buffer_atomic_add v28, v29, s[92:95], s96 offen sc1")
        k("s_mov_b64 exec, -1")
        k(f"{sk}:")
    def wait(self, cnt_s, target, n=1, barrier=True):
        k = self.k
        sk = k.label("wt"); lp = k.label("poll"); dn = k.label("pdone")
        k(f"s_cmp_lg_u32 s3, 0\ns_cbranch_scc1 {sk}")
        k(f"s_lshl_b32 s96, {cnt_s}, 8")
        k(f"v_and_b32 v29, {n-1}, v1\nv_lshlrev_b32 v29, 8, v29")
        k("s_mov_b32 s97, 0")
        k(f"s_mov_b64 exec, {(1 << n) - 1}")
        k(f"{lp}:")
        k("buffer_load_dword v28, v29, s[92:95], s96 offen sc1")
        k("s_waitcnt vmcnt(0)")
        k(f"v_cmp_ne_u32 vcc, {target}, v28")
        k(f"s_cbranch_vccz {dn}")
        k(f"s_add_u32 s97, s97, 1\ns_cmp_lt_u32 s97, 100000\ns_cbranch_scc1 {lp}")
        k(f"{dn}:")
        k("s_mov_b64 exec, -1")
        k(f"{sk}:")
        if barrier: k("s_barrier")

    def entry(self):
        k = self.k
        k(f"s_cmp_ge_u32 s2, 256\ns_cbranch_scc1 {self.end}")
        k("s_load_dwordx16 s[64:79], s[0:1], 0")
        k("s_load_dwordx8 s[80:87], s[0:1], 64")
        k("s_load_dwordx2 s[4:5], s[0:1], 96")
        k("v_lshrrev_b32 v3, 6, v0")
        k("v_and_b32 v1, 63, v0")
        k("v_readfirstlane_b32 s3, v3")
        k("v_lshlrev_b32 v2, 4, v1")
        k("s_and_b32 s6, s2, 7\ns_lshr_b32 s7, s2, 3")
        if self.opt.get("stamp"): k("v_mov_b32 v31, 0\nv_mov_b32 v30, 0")

    def gemv_ops(self, W, n, sreg, T, A):
        L = []
        for i in range(n):
            for d in range(4):
                L.append(f"v_lshlrev_b32 v{T+2*d}, 16, v{W+4*i+d}")
                L.append(f"v_and_b32 v{T+2*d+1}, 0xffff0000, v{W+4*i+d}")
            for j in range(0, 8, 2):
                sp = sreg(i); spp = sp & ~1
                if i == 0: L.append(f"v_pk_mul_f32 {vr(A+j,2)}, {vr(T+j,2)}, {vr(spp,2)} " + ("op_sel_hi:[1,0]" if sp % 2 == 0 else "op_sel:[0,1]"))
                else: L.append(f"v_pk_fma_f32 {vr(A+j,2)}, {vr(T+j,2)}, {vr(spp,2)}, {vr(A+j,2)} " + ("op_sel_hi:[1,0,1]" if sp % 2 == 0 else "op_sel:[0,1,0]"))
        L.append("s_nop 1")
        L += [f"v_permlane32_swap_b32 v{A+j}, v{A+4+j}" for j in range(4)]
        L += [f"v_add_f32 v{A+j}, v{A+j}, v{A+4+j}" for j in range(4)]
        L.append("s_nop 1")
        L += [f"v_permlane16_swap_b32 v{A+j}, v{A+2+j}" for j in range(2)]
        L += [f"v_add_f32 v{A+j}, v{A+j}, v{A+2+j}" for j in range(2)]
        L.append("s_nop 1")
        L += [f"v_add_f32_dpp v{A+2+j}, v{A+j}, v{A+j} row_ror:8 row_mask:0xf bank_mask:0xf" for j in range(2)]
        return L
    L_SILU, L_RED, L_ST, L_MOD = 104448, 108544, 110592, 111104
    def p0(self):
        k = self.k; o = self.opt
        L_SILU, L_RED, L_ST, L_MOD = self.L_SILU, self.L_RED, self.L_ST, self.L_MOD
        k("v_and_b32 v3, 7, v0\nv_lshrrev_b32 v19, 3, v0")
        k(f"v_mul_u32_u24 v16, {4*12288}, v19\nv_lshl_add_u32 v16, v3, 4, v16")
        k("v_lshlrev_b32 v17, 3, v0")
        k("v_lshrrev_b32 v10, 3, v1")
        k("v_lshlrev_b32 v18, 11, v3\nv_lshl_add_u32 v18, v10, 4, v18")
        k("s_lshl_b32 s12, s3, 9\nv_add_u32 v18, s12, v18")
        k(f"s_and_b32 s20, s2, 31\ns_lshl_b32 s20, s20, 7\ns_lshr_b32 s21, s2, 5\ns_mul_i32 s22, s21, {128*12288}\ns_add_u32 s22, s20, s22")
        k("s_lshl_b32 s20, s2, 14")
        k("s_waitcnt lgkmcnt(0)")
        self.stamp("start")
        srd(k, 12, f"s{P_WMOD}", f"s{P_WMOD+1}", 1024 * 12288)
        srd(k, 8, f"s{P_C}", f"s{P_C+1}", 2048)
        srd_off(k, 16, P_X, "s20", 16384)
        srd_off(k, 92, 4, FLG_OFF, NCNT * 256)
        nz = k.label("nz")
        k(f"s_or_b32 s20, s2, s3\ns_cmp_lg_u32 s20, 0\ns_cbranch_scc1 {nz}")
        k("v_mov_b32 v22, 0\nv_lshlrev_b32 v23, 8, v1")
        k("s_mov_b32 s20, 16384")
        k("buffer_store_dword v22, v23, s[92:95], 0 offen sc1")
        k("buffer_store_dword v22, v23, s[92:95], s20 offen sc1")
        srd(k, 24, f"s{P_DBG}", f"s{P_DBG+1}", 256)
        k("v_mov_b32 v24, 1")
        k("s_waitcnt vmcnt(0)")
        k("buffer_store_dword v24, v22, s[24:27], 0 offen sc1")
        k(f"{nz}:")
        k("buffer_load_dwordx2 v[20:21], v17, s[8:11], 0 offen")
        WC, XR = 32, 48
        for i in range(4):
            k(f"buffer_load_dwordx4 {vr(WC+4*i,4)}, v16, s[12:15], s22 offen nt")
            if i < 3: k("s_add_u32 s22, s22, 12288")
        for j in range(4): k(f"buffer_load_dwordx4 {vr(XR+4*j,4)}, v18, s[16:19], 0 offen offset:{128*j} nt")
        NX = 0
        if o.get("pfcode", 1):
            NX = 1
            k("s_getpc_b64 s[24:25]")
            k(f"{k.name}_pc0:")
            k(f"s_sub_u32 s24, s24, {k.name}_pc0-{k.name}\ns_subb_u32 s25, s25, 0\ns_and_b32 s25, s25, 0xffff")
            k(f"s_mov_b32 s26, {self.end}-{k.name}\ns_mov_b32 s27, 0x20000")
            k("s_lshl_b32 s20, s7, 13\ns_cmp_eq_u32 s3, 3\ns_cselect_b32 s20, s20, 0x1000000")
            k("v_lshlrev_b32 v22, 7, v1")
            k("buffer_load_dword a253, v22, s[24:27], s20 offen")
        self.qkv_setup()
        srd(k, 24, f"s{P_DBG}", f"s{P_DBG+1}", 256)
        k(f"s_waitcnt vmcnt({8+NX})")
        S = 112
        unpack(k, S, S + 1, 20); unpack(k, S + 2, S + 3, 21)
        k(f"s_mov_b32 s20, {NLOG2E}")
        for i in range(4): k(f"v_mul_f32 v{S+4+i}, s20, v{S+i}")
        for i in range(4): k(f"v_exp_f32 v{S+4+i}, v{S+4+i}")
        k("s_nop 0")
        for i in range(4): k(f"v_add_f32 v{S+4+i}, 1.0, v{S+4+i}")
        for i in range(4): k(f"v_rcp_f32 v{S+4+i}, v{S+4+i}")
        k("s_nop 0")
        for i in range(4): k(f"v_mul_f32 v{S+i}, v{S+i}, v{S+4+i}")
        bf16r_pair(k, S, S + 1); bf16r_pair(k, S + 2, S + 3)
        k(f"v_lshlrev_b32 v16, 4, v0\nv_add_u32 v16, {L_SILU}, v16")
        k(f"ds_write_b128 v16, {vr(S,4)}")
        k(f"s_lshl_b32 s20, s21, 9\ns_add_u32 s20, s20, {L_SILU}")
        k("v_lshlrev_b32 v16, 4, v19\nv_add_u32 v16, s20, v16")
        k("s_waitcnt lgkmcnt(0)\ns_barrier")
        k(f"ds_read_b128 {vr(S,4)}, v16")
        A = 124; T = 116
        k("v_bfe_u32 v16, v0, 4, 2\nv_lshlrev_b32 v16, 3, v16\nv_lshl_add_u32 v16, v3, 5, v16")
        k(f"s_lshl_b32 s20, s3, 8\ns_add_u32 s20, s20, {L_RED}\nv_add_u32 v16, s20, v16")
        k(f"s_waitcnt vmcnt({4+NX}) lgkmcnt(0)")
        for x in self.gemv_ops(WC, 4, lambda i: S + i, T, A): k(x)
        k(f"ds_write_b64 v16, {vr(A+2,2)}")
        k("s_waitcnt lgkmcnt(0)\ns_barrier")
        nw = k.label("nw"); nw2 = k.label("nw2")
        k(f"s_cmp_lg_u32 s3, 0\ns_cbranch_scc1 {nw}")
        k(f"v_lshlrev_b32 v18, 2, v1\nv_add_u32 v19, {L_RED}, v18")
        for w in range(4): k(f"ds_read_b32 v{20+w}, v19 offset:{256*w}")
        k(f"s_lshl_b32 s20, s21, 13\ns_and_b32 s22, s2, 31\ns_lshl_b32 s22, s22, 8\ns_add_u32 s20, s20, s22\ns_add_u32 s20, s20, {MODP_OFF}")
        srd_off(k, 8, 4, "s20", 256)
        k("v_mov_b32 v24, 0")
        k("s_waitcnt lgkmcnt(0)")
        k("v_add_f32 v20, v20, v21\nv_add_f32 v22, v22, v23\nv_add_f32 v20, v20, v22")
        k("buffer_store_dword v20, v18, s[8:11], 0 offen sc1")
        rl = k.label("rdy"); rd = k.label("rdyd")
        k("s_mov_b32 s97, 0")
        k(f"{rl}:")
        k("buffer_load_dword v25, v24, s[24:27], 0 offen sc1")
        k("s_waitcnt vmcnt(0)")
        k("v_cmp_ne_u32 vcc, 1, v25")
        k(f"s_cbranch_vccz {rd}")
        k(f"s_add_u32 s97, s97, 1\ns_cmp_lt_u32 s97, 100000\ns_cbranch_scc1 {rl}")
        k(f"{rd}:")
        k("s_and_b32 s20, s2, 15")
        self.arrive("s20", pre="s_nop 0", barrier=False)
        k(f"{nw}:")
        k("s_waitcnt vmcnt(1)")
        k(f"s_cmp_eq_u32 s3, 0\ns_cbranch_scc1 {nw2}\ns_waitcnt vmcnt(0)\n{nw2}:")
        self.stamp("S0 arrive")
        pf = self.qkv_prefetch()
        k0 = k; cnt = [0]
        def k(s_):
            k0(s_); cnt[0] += 1
            if pf and cnt[0] % 4 == 0: k0(pf.pop(0))
        X = 132; D = 164
        for d in range(16): unpack(k, X + 2 * d, X + 2 * d + 1, XR + d)
        def xreduce(r, t):
            k("s_nop 1")
            k(f"v_add_f32_dpp v{r}, v{r}, v{r} row_ror:8 row_mask:0xf bank_mask:0xf")
            k(f"v_mov_b32 v{t}, v{r}\ns_nop 1\nv_permlane16_swap_b32 v{r}, v{t}\nv_add_f32 v{r}, v{r}, v{t}")
            k(f"v_mov_b32 v{t}, v{r}\ns_nop 1\nv_permlane32_swap_b32 v{r}, v{t}\nv_add_f32 v{r}, v{r}, v{t}")
        for d in range(8): k(f"v_pk_add_f32 {vr(D+2*d,2)}, {vr(X+4*d,2)}, {vr(X+4*d+2,2)}")
        for st in (4, 2, 1):
            for d in range(st): k(f"v_pk_add_f32 {vr(D+2*d,2)}, {vr(D+2*d,2)}, {vr(D+2*(d+st),2)}")
        k(f"v_add_f32 v16, v{D}, v{D+1}")
        xreduce(16, 18)
        k("v_mul_f32 v16, 0x3b800000, v16")
        for d in range(16): k(f"v_pk_add_f32 {vr(D+2*d,2)}, {vr(X+2*d,2)}, v[16:17] op_sel_hi:[1,0] neg_lo:[0,1] neg_hi:[0,1]")
        k(f"v_pk_mul_f32 v[18:19], {vr(D,2)}, {vr(D,2)}\nv_pk_mul_f32 v[20:21], {vr(D+2,2)}, {vr(D+2,2)}")
        for d in range(2, 16): k(f"v_pk_fma_f32 {vr(18+2*(d&1),2)}, {vr(D+2*d,2)}, {vr(D+2*d,2)}, {vr(18+2*(d&1),2)}")
        k("v_pk_add_f32 v[18:19], v[18:19], v[20:21]\nv_add_f32 v17, v18, v19")
        xreduce(17, 18)
        k(f"v_lshlrev_b32 v13, 5, v3\nv_add_u32 v13, {L_ST}, v13")
        k("s_lshl_b32 s20, s3, 3\nv_add_u32 v18, s20, v13")
        k("ds_write_b64 v18, v[16:17]")
        k("s_waitcnt lgkmcnt(0)\ns_barrier")
        k(f"ds_read_b128 v[16:19], v13\nds_read_b128 v[20:23], v13 offset:16")
        k("s_waitcnt lgkmcnt(0)")
        k("v_pk_add_f32 v[24:25], v[16:17], v[18:19]\nv_pk_add_f32 v[26:27], v[20:21], v[22:23]\nv_pk_add_f32 v[24:25], v[24:25], v[26:27]")
        k("v_mul_f32 v24, 0x3e800000, v24")
        k("v_mov_b32 v26, 0")
        for w in range(4):
            k(f"v_sub_f32 v27, v{16+2*w}, v24\nv_fmac_f32 v26, v27, v27")
        k("v_fmac_f32 v25, 0x43800000, v26")
        k("v_mul_f32 v25, 0x3a800000, v25")
        bf16r_pair(k, 24, 25)
        k("v_add_f32 v25, 0x3727c5ac, v25"); bf16r(k, 25)
        k("v_sqrt_f32 v25, v25\ns_nop 0"); bf16r(k, 25)
        k("v_rcp_f32 v26, v25")
        for d in range(16): k(f"v_pk_add_f32 {vr(X+2*d,2)}, {vr(X+2*d,2)}, v[24:25] op_sel_hi:[1,0] neg_lo:[0,1] neg_hi:[0,1]")
        for d in range(16): bf16r_pair(k, X + 2 * d, X + 2 * d + 1)
        for d in range(16): k(f"v_pk_mul_f32 {vr(X+2*d,2)}, {vr(X+2*d,2)}, v[26:27] op_sel_hi:[1,0]")
        for d in range(16): bf16r_pair(k, X + 2 * d, X + 2 * d + 1)
        assert not pf
        k = k0
        n2 = k.label("n2")
        k(f"s_cmp_lg_u32 s3, 2\ns_cbranch_scc1 {n2}")
        k(f"s_lshl_b32 s20, s2, 9\ns_add_u32 s20, s20, {STAT_OFF}")
        srd_off(k, 24, 4, "s20", 512)
        k(f"v_mov_b32 v20, 0\nv_mov_b32 v21, {SENT}\nv_mov_b32 v22, 0\nv_mov_b32 v23, {SENT}")
        k("buffer_store_dwordx4 v[20:23], v2, s[24:27], 0 offen sc1")
        k(f"{n2}:")
        srd_off(k, 8, 4, MODP_OFF, 8 * 8192)
        k("v_add_u32 v16, 4096, v2")
        k(f"s_lshl_b32 s20, s3, 11\ns_add_u32 s20, s20, {L_MOD}")
        k("v_add_u32 v18, s20, v2")
        k("v_lshlrev_b32 v24, 5, v10\nv_add_u32 v24, s20, v24")
        srd_off(k, 24, 4, H1_OFF, 4 * MB)
        k("v_lshrrev_b32 v19, 2, v10\nv_lshlrev_b32 v19, 17, v19\nv_and_b32 v25, 3, v10\nv_lshl_add_u32 v19, v25, 8, v19\nv_lshl_add_u32 v19, v3, 4, v19")
        k("s_lshl_b32 s22, s3, 20\ns_lshr_b32 s21, s2, 1\ns_lshl_b32 s21, s21, 10\ns_add_u32 s22, s22, s21\ns_and_b32 s21, s2, 1\ns_lshl_b32 s21, s21, 7\ns_add_u32 s22, s22, s21")
        k("s_lshl_b32 s21, s3, 10")
        k(f"s_mov_b32 s20, {C_S0}")
        self.stamp("ln1 pre done")
        self.wait("s20", 16, 16)
        self.stamp("S0 done")
        MP = 32
        for p in range(8):
            k(f"buffer_load_dwordx4 {vr(MP+8*p,4)}, v2, s[8:11], s21 offen{self.LD}")
            k(f"buffer_load_dwordx4 {vr(MP+8*p+4,4)}, v16, s[8:11], s21 offen{self.LD}")
            if p < 7: k("s_add_u32 s21, s21, 8192")
        for p in range(1, 8):
            k(f"s_waitcnt vmcnt({14-2*p})")
            for h in range(4): k(f"v_pk_add_f32 {vr(MP+2*h,2)}, {vr(MP+2*h,2)}, {vr(MP+8*p+2*h,2)}")
        for h in range(4): bf16r_pair(k, MP + 2 * h, MP + 2 * h + 1)
        for j in range(4, 8): k(f"v_add_f32 v{MP+j}, 1.0, v{MP+j}")
        for h in range(2, 4): bf16r_pair(k, MP + 2 * h, MP + 2 * h + 1)
        k(f"ds_write_b128 v18, {vr(MP,4)}\nds_write_b128 v18, {vr(MP+4,4)} offset:1024")
        SH, SC = 32, 64
        k("s_waitcnt lgkmcnt(0)")
        for j in range(4):
            for h in range(2): k(f"ds_read_b128 {vr(SC+8*j+4*h,4)}, v24 offset:{1024+256*j+16*h}")
            for h in range(2): k(f"ds_read_b128 {vr(SH+8*j+4*h,4)}, v24 offset:{256*j+16*h}")
        for j in range(4):
            R = range(4 * j, 4 * j + 4)
            k(f"s_waitcnt lgkmcnt({12-4*j})")
            for d in R: k(f"v_pk_mul_f32 {vr(X+2*d,2)}, {vr(X+2*d,2)}, {vr(SC+2*d,2)}")
            for d in R: bf16r_pair(k, X + 2 * d, X + 2 * d + 1)
            for d in R: k(f"v_pk_add_f32 {vr(X+2*d,2)}, {vr(X+2*d,2)}, {vr(SH+2*d,2)}")
            for d in R: k(f"v_cvt_pk_bf16_f32 v{96+d}, v{X+2*d}, v{X+2*d+1}")
            k(f"buffer_store_dwordx4 {vr(96+4*j,4)}, v19, s[24:27], s22 offen sc1")
            if j < 3: k("s_add_u32 s22, s22, 0x40000")
        self.stamp("h1 stored")
        k(f"s_lshr_b32 s20, s2, 4\ns_add_u32 s20, s20, {C_S1}")
        self.arrive("s20")
        self.stamp("S1 arrive")

    def featmap(self, n, PT, EP, EM, ST, SM, emit_out, fill=None, mid=None, mid_at=0):
        k0 = self.k
        fill = list(fill or [])
        cnt = [0]
        def k(s):
            k0(s)
            cnt[0] += 1
            if mid and cnt[0] == mid_at: mid()
            if fill and cnt[0] > mid_at and cnt[0] % self.fill_every == 0 and not s.startswith("s_nop"): k0(fill.pop(0))
        for g in range(n):
            p = PT + g * 8
            for d in range(4): k(f"v_cvt_pk_bf16_f32 v{p+2*d+1}, v{p+2*d}, v{p+2*d+1}")
            for d in range(4):
                k(f"v_lshlrev_b32 v{p+2*d}, 16, v{p+2*d+1}")
                k(f"v_and_b32 v{p+2*d+1}, 0xffff0000, v{p+2*d+1}")
        X = lambda j: ST + 4 * j
        Y = lambda j: ST + 4 * j + 2
        for j in range(n):
            p = PT + j * 8; t = X(j) + 1; t2 = Y(j) + 1
            k(f"v_max3_f32 v{X(j)}, v{p}, v{p+1}, v{p+2}")
            k(f"v_max3_f32 v{t}, v{p+3}, v{p+4}, v{p+5}")
            k(f"v_max3_f32 v{Y(j)}, -v{p}, -v{p+1}, -v{p+2}")
            k(f"v_max3_f32 v{t2}, -v{p+3}, -v{p+4}, -v{p+5}")
            k(f"v_max3_f32 v{X(j)}, v{X(j)}, v{p+6}, v{p+7}")
            k(f"v_max3_f32 v{Y(j)}, v{Y(j)}, -v{p+6}, -v{p+7}")
            k(f"v_max_f32 v{X(j)}, v{X(j)}, v{t}")
            k(f"v_max_f32 v{Y(j)}, v{Y(j)}, v{t2}")
        def allred(op, post):
            k("s_nop 1")
            for j in range(n): k(f"v_permlane16_swap_b32 v{X(j)}, v{Y(j)}")
            for j in range(n): k(f"{op} v{X(j)}, v{X(j)}, v{Y(j)}")
            for j in range(n): k(f"v_mov_b32 v{Y(j)}, v{X(j)}")
            k("s_nop 1")
            for j in range(n): k(f"v_permlane32_swap_b32 v{X(j)}, v{Y(j)}")
            for j in range(n): k(f"{op} v{X(j)}, v{X(j)}, v{Y(j)}")
            for j in range(n): k(post(X(j)))
            k("s_nop 0")
            for j in range(n): k(f"v_mov_b32 v{Y(j)}, v{X(j)}")
            k("s_nop 1")
            for j in range(n): k(f"v_permlane16_swap_b32 v{X(j)}, v{Y(j)}")
        allred("v_max_f32", lambda r: f"v_mul_f32 v{r}, s10, v{r}")
        for j in range(n):
            p = PT + j * 8
            for d in range(4):
                k(f"v_pk_fma_f32 {vr(EP+j*8+2*d,2)}, {vr(p+2*d,2)}, s[8:9], {vr(X(j),2)} op_sel_hi:[1,1,0]")
                k(f"v_pk_fma_f32 {vr(EM+j*8+2*d,2)}, {vr(p+2*d,2)}, s[10:11], {vr(Y(j),2)} op_sel_hi:[1,1,0]")
            for d in range(8):
                k(f"v_exp_f32 v{EP+j*8+d}, v{EP+j*8+d}")
                k(f"v_exp_f32 v{EM+j*8+d}, v{EM+j*8+d}")
        k("s_nop 0")
        for j in range(n):
            for q, E in enumerate((EP, EM)):
                e = E + j * 8; t = SM + 4 * q
                k(f"v_pk_add_f32 {vr(t,2)}, {vr(e,2)}, {vr(e+2,2)}")
                k(f"v_pk_add_f32 {vr(t+2,2)}, {vr(e+4,2)}, {vr(e+6,2)}")
            for q in range(2):
                t = SM + 4 * q
                k(f"v_pk_add_f32 {vr(t,2)}, {vr(t,2)}, {vr(t+2,2)}")
            for q, R in enumerate((X(j), Y(j))):
                t = SM + 4 * q
                k(f"v_add_f32 v{R}, v{t}, v{t+1}")
        allred("v_add_f32", lambda r: f"v_rcp_f32 v{r}, v{r}")
        for j in range(n):
            for pm, (E, R) in enumerate(((EP, X(j)), (EM, Y(j)))):
                e = E + j * 8
                for d in range(4): k(f"v_pk_mul_f32 {vr(e+2*d,2)}, {vr(e+2*d,2)}, {vr(R,2)} op_sel_hi:[1,0]")
                emit_out(j, pm, e)
        for f in fill: k0(f)

    def qkv_setup(self):
        k = self.k; o = self.opt
        REG = 3136; STG = 8 * REG; WPHI = 4 * STG
        WS = o.get("qWS", 4)
        k("s_and_b32 s58, s7, 7\ns_lshr_b32 s59, s7, 3")
        k("s_and_b32 s61, s6, 1\ns_lshl_b32 s61, s61, 3\ns_add_u32 s62, s61, s58")
        k("s_lshr_b32 s61, s6, 1\ns_lshl_b32 s61, s61, 2\ns_add_u32 s63, s61, s59")
        k(f"s_lshl_b32 s60, s59, 1\ns_add_u32 s60, s60, s58\ns_and_b32 s60, s60, {WS-1}")
        k("s_lshl_b32 s61, s3, 11\nv_add_u32 v4, s61, v2")
        k("s_lshl_b32 s61, s3, 10\nv_add_u32 v12, s61, v2")
        k("v_lshrrev_b32 v6, 3, v1\nv_and_b32 v7, 7, v1\nv_bfe_u32 v8, v1, 4, 1\nv_lshlrev_b32 v8, 1, v8\nv_xor_b32 v7, v7, v8")
        k("s_lshl_b32 s61, s3, 3\nv_add_u32 v6, s61, v6\nv_mul_u32_u24 v6, 6144, v6\nv_lshl_add_u32 v5, v7, 4, v6")
        k("v_lshrrev_b32 v11, 4, v1\nv_bfe_u32 v14, v1, 2, 2\nv_and_b32 v15, 3, v1")
        k(f"v_mul_u32_u24 v9, {REG}, v11\nv_lshl_add_u32 v9, v14, 7, v9\nv_lshl_add_u32 v9, v15, 3, v9")
        k("v_lshrrev_b32 v8, 1, v14\nv_lshl_add_u32 v6, v8, 5, v9\nv_xor_b32 v8, 1, v8\nv_lshl_add_u32 v7, v8, 5, v9")
        k(f"v_add_u32 v8, {2*STG}, v6\nv_add_u32 v9, {2*STG}, v7")
        k(f"s_lshl_b32 s61, s62, 13\ns_sub_u32 s53, {4*MB}, s61\ns_add_u32 s61, s61, {H1_OFF}")
        srd_off(k, 32, 4, "s61", "s53")
        for seg in range(3):
            k(f"s_lshl_b32 s61, s63, 7\ns_add_u32 s61, s61, {1024*seg}\ns_sub_u32 s53, {1024*6144}, s61")
            srd_off(k, 36 + 4 * seg, P_WQKV, "s61", "s53")
        k("s_lshl_b32 s61, s63, 12")
        srd_off(k, 48, P_WPHI, "s61", 4096)
        k(f"s_mul_i32 s52, s3, {REG}")
        self.q = dict(REG=REG, STG=STG, WPHI=WPHI, WS=WS)
        k("s_mov_b32 s58, 0\ns_mov_b32 s59, s60")
    def qkv_prefetch(self):
        WPHI = self.q["WPHI"]
        pf = []
        for s_ in range(3):
            pf.append("\n".join(self.q_nxt() + [f"s_mov_b32 s{28+s_}, s53"]))
            for x in self.q_loads(s_):
                if x.startswith("s_"): pf.append(x + "\ns_nop 0")
                elif " lds" in x: pf.append(x)
        pf.append(f"s_lshl_b32 s61, s3, 10\ns_add_u32 m0, s61, {WPHI}\ns_nop 0\nbuffer_load_dwordx4 v12, s[48:51], 0 offen lds")
        if self.opt.get("pfq", 0):
            t = ["s_lshl_b32 s22, s7, 2\ns_add_u32 s22, s22, s3\ns_lshl_b32 s22, s22, 3\nv_add_u32 v200, s22, v10\nv_mul_u32_u24 v200, 6144, v200\nv_lshl_add_u32 v200, v15, 7, v200",
                 "v_bfe_u32 v201, v1, 2, 1\nv_lshl_add_u32 v201, v201, 11, v200\ns_lshr_b32 s22, s6, 1\ns_lshl_b32 s22, s22, 9\ns_add_u32 s23, s22, 4096",
                 f"s_mov_b32 s12, s{P_WQKV}\ns_and_b32 s13, s{P_WQKV+1}, 0xffff\ns_mov_b32 s14, {1024*6144}\ns_mov_b32 s15, 0x20000",
                 "buffer_load_dword a254, v201, s[12:15], s22 offen", "buffer_load_dword a255, v200, s[12:15], s23 offen"]
            pf = pf[:9] + t + pf[9:] if self.opt.get("pfq", 0) == 1 else pf + t
        return pf
    def q_nxt(self):
        WS = self.q["WS"]
        return ["s_add_u32 s61, s58, s59", "s_lshl_b32 s53, s61, 18", f"s_mul_i32 s54, s61, {64*6144}",
                "s_add_u32 s55, s53, 0x20000", f"s_add_u32 s56, s54, {32*6144}",
                "s_add_u32 s59, s59, 1", f"s_and_b32 s59, s59, {WS-1}", "s_cmp_eq_u32 s59, s60", f"s_cselect_b32 s61, {WS}, 0", "s_add_u32 s58, s58, s61"]
    def q_loads(self, slot):
        REG, STG = self.q["REG"], self.q["STG"]; AR = 64
        L = []
        for u in range(2):
            L.append(f"s_add_u32 m0, s52, {slot*STG + u*4*REG}")
            L.append(f"buffer_load_dwordx4 {ar(AR+slot*16+u*8,4)}, v4, s[32:35], s{53+2*u} offen{self.LD}")
            for seg in range(3):
                L.append(f"buffer_load_dwordx4 v5, s[{36+4*seg}:{39+4*seg}], s{54+2*u} offen offset:{1024*seg} lds")
            L.append(f"buffer_load_dwordx4 {ar(AR+slot*16+u*8+4,4)}, v4, s[32:35], s{53+2*u} offen offset:1024{self.LD}")
        return L
    def qkv(self):
        k = self.k; o = self.opt
        REG, STG, WPHI = self.q["REG"], self.q["STG"], self.q["WPHI"]
        WF = 0; AR = 64; ACC = 160
        def acc(tt, i): return ACC + (tt * 2 + i) * 4
        def rd(slot, u, tt):
            seg, t = tt >> 2, tt & 3
            off = (slot & 1) * STG + u * 4 * REG + seg * 1024 + (t >> 1) * 64
            va = 6 + (t & 1) + 2 * (slot >> 1)
            return [f"ds_read_b64_tr_b16 {ar(WF+tt*4,2)}, v{va} offset:{off}", f"ds_read_b64_tr_b16 {ar(WF+tt*4+2,2)}, v{va} offset:{off+512}"]
        for r in range(96): k(f"v_mov_b32 v{ACC+r}, 0")
        for tt in range(12):
            for x in rd(0, 0, tt): k(x)
        k(f"v_lshrrev_b32 v16, 2, v1\nv_lshlrev_b32 v16, 6, v16\nv_lshl_add_u32 v16, v15, 3, v16\nv_add_u32 v16, {WPHI}, v16")
        for hh in range(2):
            for ft in range(2):
                b = 48 + (hh * 2 + ft) * 4
                k(f"ds_read_b64_tr_b16 {ar(b,2)}, v16 offset:{hh*2048+ft*32}")
                k(f"ds_read_b64_tr_b16 {ar(b+2,2)}, v16 offset:{hh*2048+ft*32+1024}")
        PKP, VP = 144, 80
        PKO = WPHI + 4096; VO = PKO + 36864
        k("v_and_b32 v16, 15, v1\ns_lshl_b32 s61, s3, 5\nv_add_u32 v17, s61, v16")
        k(f"v_mul_u32_u24 v18, {PKP}, v17\nv_lshl_add_u32 v18, v11, 4, v18\nv_add_u32 v18, {PKO}, v18")
        k(f"v_mul_u32_u24 v19, {VP}, v17\nv_lshl_add_u32 v19, v11, 3, v19\nv_add_u32 v19, {VO}, v19")
        k("v_lshl_add_u32 v17, v11, 3, v14")
        k("s_lshr_b32 s12, s3, 1\ns_and_b32 s13, s3, 1")
        k(f"s_mul_i32 s14, s12, 18432\ns_lshl_b32 s15, s13, 6\ns_add_u32 s14, s14, s15\ns_add_u32 s14, s14, {PKO}")
        k(f"v_mul_u32_u24 v20, {PKP}, v17\nv_lshl_add_u32 v20, v15, 4, v20\nv_add_u32 v20, s14, v20")
        k(f"s_mul_i32 s14, s12, 10240\ns_add_u32 s14, s14, {VO}")
        k(f"v_mul_u32_u24 v21, {VP}, v17\nv_lshl_add_u32 v21, v15, 3, v21\nv_add_u32 v21, s14, v21")
        k(f"s_lshl_b32 s14, s62, 5\ns_lshl_b32 s15, s63, 1\ns_add_u32 s14, s14, s15\ns_add_u32 s14, s14, s12\ns_mul_i32 s14, s14, {KVS}\ns_add_u32 s14, s14, {KVP_OFF}")
        srd_off(k, 16, 4, "s14", KVS)
        k("s_lshl_b32 s14, s13, 11\nv_add_u32 v22, s14, v2")
        k("v_lshlrev_b32 v23, 13, v16\nv_lshl_add_u32 v23, v11, 4, v23\ns_lshl_b32 s14, s13, 6\ns_add_u32 s14, s14, 4096\nv_add_u32 v23, s14, v23")
        k(f"s_mov_b32 s8, {LOG2E}\ns_mov_b32 s9, {LOG2E}\ns_mov_b32 s10, {NLOG2E}\ns_mov_b32 s11, {NLOG2E}")
        for r in range(4): k(f"v_mov_b32 v{24+r}, 0x3f803f80")
        k(f"s_and_b32 s20, s2, 63\ns_lshl_b32 s20, s20, 7\ns_lshr_b32 s23, s2, 6\ns_mul_i32 s21, s23, {256*12288}\ns_add_u32 s21, s21, s20\ns_add_u32 s21, s21, 4096")
        k(f"s_sub_u32 s20, {256*12288 - 4096}, s20")
        srd_off(k, 24, P_WMOD, "s21", "s20")
        k("v_lshrrev_b32 v13, 3, v0\nv_mul_u32_u24 v10, 12288, v13\nv_lshl_add_u32 v10, v3, 4, v10")
        k(f"s_lshl_b32 s20, s23, 10\ns_add_u32 s20, s20, {self.L_SILU}\nv_lshlrev_b32 v13, 2, v13\nv_add_u32 v13, s20, v13")
        for j in range(8): k(f"ds_read_b32 v{32+j}, v13 offset:{128*j}")
        k(f"s_mov_b32 s21, {0x10000000 if o.get('norest') else 0}\ns_mul_i32 s22, s3, 12288\ns_add_u32 s22, s22, {PKO}\nv_add_u32 v13, s22, v2")
        k("v_bfe_u32 v12, v0, 4, 2\nv_lshlrev_b32 v12, 3, v12\nv_lshl_add_u32 v12, v3, 5, v12")
        k(f"s_lshl_b32 s20, s3, 8\ns_add_u32 s20, s20, {WPHI}\nv_add_u32 v12, s20, v12")
        k("s_lshl_b32 s20, s7, 2\ns_add_u32 s20, s20, s3\ns_lshl_b32 s20, s20, 3\nv_lshrrev_b32 v56, 3, v1\nv_add_u32 v56, s20, v56")
        k("v_mul_u32_u24 v57, 7168, v56\nv_lshl_add_u32 v57, v3, 7, v57\nv_lshlrev_b32 v56, 11, v56\nv_lshl_add_u32 v56, v3, 7, v56")
        k("s_waitcnt lgkmcnt(0)")
        k(f"s_add_u32 s20, s62, {C_S1}")
        self.wait("s20", 16)
        self.stamp("S1 done")
        for s_ in range(3):
            k(f"s_add_u32 s61, s{28+s_}, 0x20000")
            for u in range(2):
                so = f"s{28+s_}" if u == 0 else "s61"
                k(f"buffer_load_dwordx4 {ar(AR+s_*16+u*8,4)}, v4, s[32:35], {so} offen{self.LD}")
                k(f"buffer_load_dwordx4 {ar(AR+s_*16+u*8+4,4)}, v4, s[32:35], {so} offen offset:1024{self.LD}")
        def substep(slot, u, fill, last=False):
            nslot, nu = (slot, 1) if u == 0 else ((slot + 1) % 4, 0)
            fi = 0
            for tt in range(12):
                if last: k(f"s_waitcnt lgkmcnt({min(15, 22 - 2*tt)})")
                elif tt % 3 == 0: k("s_waitcnt lgkmcnt(15)")
                for i in range(2):
                    k(f"v_mfma_f32_16x16x32_bf16 {vr(acc(tt,i),4)}, {ar(WF+tt*4,4)}, {ar(AR+slot*16+u*8+i*4,4)}, {vr(acc(tt,i),4)}")
                    if tt > 0 and not last: k(rd(nslot, nu, tt - 1)[i])
                    if (i == 1 or tt == 0) and fi < len(fill):
                        k(fill[fi]); fi += 1
            if not last:
                for x in rd(nslot, nu, 11): k(x)
            assert fi == len(fill), (fi, len(fill))
        k("s_waitcnt vmcnt(10) lgkmcnt(0)")
        self.stamp("A0 in")
        substep(0, 0, [])
        k("s_waitcnt vmcnt(0)")
        k("s_mov_b32 s57, 3")
        def stage(s_, loads, wait, cnt=False, x1=None, x2=None):
            k(f"s_waitcnt vmcnt({wait})")
            k("s_barrier")
            f1, f2 = [], []
            if loads:
                n = self.q_nxt(); ld = self.q_loads((s_ + 3) % 4)
                f1 = ["\n".join(n[0:3]), "\n".join(n[3:5])] + ld[:6] + ["\n".join(n[5:7]), "\n".join(n[7:])]
                f2 = ld[6:]
            f1 += x1 or []; f2 += x2 or []
            if cnt: f2.append("s_sub_u32 s57, s57, 1\ns_cmp_lg_u32 s57, 0")
            substep(s_, 1, f1)
            substep((s_ + 1) % 4, 0, f2)
        rest = ["s_mov_b32 m0, s22", "buffer_load_dwordx4 v10, s[24:27], s21 offen nt lds", f"s_add_u32 s21, s21, {32*12288}\ns_add_u32 s22, s22, 1024"]
        loop = k.label("qloop")
        k(".p2align 6")
        k(f"{loop}:")
        for s_ in range(4): stage(s_, True, 12, s_ == 3, x2=rest)
        k(f"s_cbranch_scc1 {loop}")
        def touch(P, off_expr, nrec, va):
            return [off_expr + f"\ns_add_u32 s12, s{P}, s20\ns_addc_u32 s13, s{P+1}, 0\ns_and_b32 s13, s13, 0xffff\ns_sub_u32 s14, {nrec}, s20\ns_mov_b32 s15, 0x20000",
                    f"buffer_load_dword a255, v{va}, s[12:15], 0 offen"]
        PFR = o.get("pf13rows", 256)
        tch = touch(P_WO, "s_and_b32 s20, s6, 1\ns_lshl_b32 s20, s20, 10", 2 * MB, 56) + touch(P_W1, "s_mul_i32 s20, s6, 896", PFR * 7168, 57) + touch(P_W3, "s_mul_i32 s20, s6, 896", PFR * 7168, 57)
        self.stamp("qkv st12")
        stage(0, True, 12, x2=tch)
        g_rd = [f"ds_read_b128 {vr(64+4*j,4)}, v13 offset:{1024*j}" for j in range(8)]
        gops = self.gemv_ops(64, 8, lambda i: 32 + i, 40, 48) + ["ds_write_b64 v12, v[50:51]"]
        def chunks(L, n): return ["\n".join(L[i:i + n]) for i in range(0, len(L), n)]
        if o.get("nogops"): gops = gops[-1:]
        gc = chunks(gops, 3)
        assert len(gc) <= 39, len(gc)
        stage(1, False, 13, x1=g_rd, x2=gc[:13])
        stage(2, False, 3, x1=gc[13:26], x2=gc[26:])
        substep(3, 1, [], True)
        self.stamp("qkv loop end")
        k("s_barrier")
        self.proj_ids()
        self.wo_pf = self.proj_setup(32, O_OFF, P_WO, o.get("wWS", 4))
        k(f"s_lshl_b32 s20, s40, 17\ns_lshl_b32 s21, s41, 8\ns_add_u32 s20, s20, s21\ns_sub_u32 s21, {4*MB}, s20")
        srd_off(k, 12, P_X, "s20", "s21")
        k("s_lshl_b32 s20, s3, 4\nv_add_u32 v17, s20, v16\nv_lshlrev_b32 v17, 11, v17\nv_lshrrev_b32 v3, 4, v1\nv_lshl_add_u32 v17, v3, 4, v17")
        self.wo_pf += [f"buffer_load_dwordx4 {ar(224+4*u,4)}, v17, s[12:15], 0 offen offset:{64*u}" for u in range(4)]
        QF = 32
        def gidx(seg, hh, i): return (seg * 2 + hh) * 2 + i
        def cvtq(seg):
            for hh in range(2):
                for i in range(2):
                    b = QF + gidx(seg, hh, i) * 4
                    for half in range(2):
                        a = acc(seg * 4 + hh * 2 + half, i)
                        k(f"v_cvt_pk_bf16_f32 v{b+2*half}, v{a}, v{a+1}")
                        k(f"v_cvt_pk_bf16_f32 v{b+2*half+1}, v{a+2}, v{a+3}")
        cvtq(1); cvtq(0)
        PT = 64
        for seg in (1, 0):
            for hh in range(2):
                for i in range(2):
                    j = hh * 2 + i
                    for ft in range(2):
                        k(f"v_mfma_f32_16x16x32_bf16 {vr(PT+(1-seg)*32+j*8+ft*4,4)}, {ar(48+(hh*2+ft)*4,4)}, {vr(QF+gidx(seg,hh,i)*4,4)}, 0")
        for hh in range(2):
            for i in range(2):
                for half in range(2):
                    a = acc(8 + hh * 2 + half, i)
                    t = 128 + ((hh * 2 + i) * 2 + half) * 2
                    k(f"v_cvt_pk_bf16_f32 v{t}, v{a}, v{a+1}")
                    k(f"v_cvt_pk_bf16_f32 v{t+1}, v{a+2}, v{a+3}")
                    k(f"ds_write_b64 v19, {vr(t,2)} offset:{hh*10240 + i*16*VP + half*32}")
        def outk(j, pm, e):
            hh, i = j >> 1, j & 1
            o_ = 32 + j * 8 + pm * 4
            for d in range(4): k(f"v_cvt_pk_bf16_f32 v{o_+d}, v{e+2*d}, v{e+2*d+1}")
            k(f"ds_write_b128 v18, {vr(o_,4)} offset:{hh*18432 + i*16*PKP + pm*64}")
        self.fill_every = 7
        self.featmap(4, PT, 160, 192, 224, 240, outk, self.wo_pf)
        k("s_waitcnt lgkmcnt(0)\ns_barrier")
        for ks in range(4):
            b = 64 + ks * 16
            for ft in range(2):
                for hf in range(2):
                    k(f"ds_read_b64_tr_b16 {ar(b+ft*4+hf*2,2)}, v20 offset:{(32*ks+4*hf)*PKP + ft*8}")
            for dt in range(2):
                for hf in range(2):
                    k(f"ds_read_b64_tr_b16 {ar(b+8+dt*4+hf*2,2)}, v21 offset:{(32*ks+4*hf)*VP + dt*32}")
        n1 = k.label("n1")
        k(f"s_cmp_lg_u32 s3, 1\ns_cbranch_scc1 {n1}")
        k(f"v_lshlrev_b32 v156, 2, v1\nv_add_u32 v157, {WPHI}, v156")
        for w in range(4): k(f"ds_read_b32 v{152+w}, v157 offset:{256*w}")
        k(f"s_lshl_b32 s20, s23, 14\ns_and_b32 s21, s2, 63\ns_lshl_b32 s21, s21, 8\ns_add_u32 s20, s20, s21\ns_add_u32 s20, s20, {MODR_OFF}")
        srd_off(k, 24, 4, "s20", 256)
        k("s_waitcnt lgkmcnt(0)")
        k("v_add_f32 v152, v152, v153\nv_add_f32 v154, v154, v155\nv_add_f32 v152, v152, v154")
        k("buffer_store_dword v152, v156, s[24:27], 0 offen sc1")
        k(f"{n1}:")
        KV = 128
        for ks in range(4):
            b = 64 + ks * 16
            k(f"s_waitcnt lgkmcnt({min(15, 8*(3-ks))})")
            for dt in range(3):
                for ft in range(2):
                    dst = vr(KV + (dt * 2 + ft) * 4, 4)
                    bop = ar(b + 8 + dt * 4, 4) if dt < 2 else "v[24:27]"
                    k(f"v_mfma_f32_16x16x32_bf16 {dst}, {ar(b+ft*4,4)}, {bop}, {dst if ks else 0}")
        k("s_nop 7")
        for dt in range(3):
            for d in range(4): k(f"v_cvt_pk_bf16_f32 v{64+dt*4+d}, v{KV+dt*8+2*d}, v{KV+dt*8+2*d+1}")
            if dt < 2: k(f"buffer_store_dwordx4 {vr(64+dt*4,4)}, v22, s[16:19], 0 offen offset:{dt*1024} sc1")
            else: k(f"buffer_store_dwordx4 {vr(64+dt*4,4)}, v23, s[16:19], 0 offen sc1")
        self.stamp("kv stored")

    def proj_ids(self):
        k = self.k
        k("s_and_b32 s58, s7, 7\ns_lshr_b32 s59, s7, 3")
        k("s_lshr_b32 s61, s6, 1\ns_lshl_b32 s61, s61, 3\ns_add_u32 s40, s61, s58")
        k("s_and_b32 s61, s6, 1\ns_lshl_b32 s61, s61, 2\ns_add_u32 s41, s61, s59")
    def proj_setup(self, KB, A_OFF, PW, WS):
        k = self.k
        self.pWS = WS
        self.pHH = KB == 112
        WM = 7 if self.pHH else 1
        k("s_and_b32 s58, s7, 7\ns_lshr_b32 s59, s7, 3")
        k(f"s_lshl_b32 s60, s59, 1\ns_add_u32 s60, s60, s58\ns_and_b32 s60, s60, {WS-1}")
        k(f"s_mul_i32 s61, s3, {WM*131072}\nv_add_u32 v3, s61, v2")
        for i in range(4): k(f"s_xor_b32 s61, s3, {i}\ns_lshl_b32 s61, s61, 10\nv_add_u32 v{4+i}, s61, v3")
        k("v_lshrrev_b32 v12, 4, v1\nv_and_b32 v13, 15, v1\nv_lshlrev_b32 v14, 2, v12\nv_xor_b32 v13, v13, v14")
        k("v_lshlrev_b32 v13, 4, v13\nv_lshl_add_u32 v13, v12, 11, v13")
        k(f"s_mul_i32 s61, s3, {WM*65536}\nv_add_u32 v8, s61, v13")
        for j in range(1, 4): k(f"v_add_u32 v{8+j}, {j*7168}, v8")
        k("s_lshl_b32 s52, s3, 13")
        k("v_bfe_u32 v13, v1, 2, 2\nv_and_b32 v14, 3, v1")
        k("v_lshlrev_b32 v3, 10, v12\nv_lshl_add_u32 v3, v13, 8, v3\nv_lshl_add_u32 v3, v14, 4, v3\nv_add_u32 v3, s52, v3")
        for u in (3, 2, 0): k(f"v_xor_b32 v{12+u}, {u}, v13\nv_lshl_add_u32 v{12+u}, v{12+u}, 6, v3")
        k("v_xor_b32 v13, 1, v13\nv_lshl_add_u32 v13, v13, 6, v3")
        k(f"s_lshl_b32 s61, s40, 12\ns_sub_u32 s53, {KB*131072}, s61\ns_add_u32 s61, s61, {A_OFF}")
        srd_off(k, 32, 4, "s61", "s53")
        k(f"s_lshl_b32 s61, s41, 8\ns_sub_u32 s53, {KB*32*2048}, s61")
        srd_off(k, 36, PW, "s61", "s53")
        k("s_mov_b32 s58, 0\ns_mov_b32 s59, s60")
        pf = []
        for s_ in range(3):
            pf.append("\n".join(self.p_nxt(True) + [f"s_mov_b32 s{28+s_}, s53"]))
            for x in self.p_loads(s_):
                if x.startswith("s_"): pf.append(x + "\ns_nop 0")
                elif " lds" in x: pf.append(x)
        return pf
    def p_nxt(self, special=False):
        WS = self.pWS
        if self.pHH:
            assert WS == 4
            if special: head = "s_add_u32 s61, s58, s59\ns_mul_i32 s61, s61, 28\ns_add_u32 s61, s61, 3"
            else: head = ("s_add_u32 s61, s58, s59\ns_sub_u32 s61, s61, 4\ns_mul_i32 s53, s61, 43\ns_lshr_b32 s53, s53, 8\ns_mul_i32 s54, s53, 6\ns_sub_u32 s54, s61, s54\n"
                          "s_mul_i32 s53, s53, 22\ns_cmp_ge_u32 s54, 3\ns_addc_u32 s61, s61, s53")
            return [head, "s_lshl_b32 s53, s61, 17", "s_lshl_b32 s54, s61, 16", "s_add_u32 s55, s54, 0x8000",
                    "s_add_u32 s59, s59, 1", f"s_and_b32 s59, s59, {WS-1}", "s_cmp_eq_u32 s59, s60", f"s_cselect_b32 s61, {WS}, 0", "s_add_u32 s58, s58, s61"]
        return ["s_add_u32 s61, s58, s59", "s_lshl_b32 s53, s61, 19", "s_lshl_b32 s54, s61, 18", "s_add_u32 s55, s54, 0x8000",
                "s_add_u32 s59, s59, 1", f"s_and_b32 s59, s59, {WS-1}", "s_cmp_eq_u32 s59, s60", f"s_cselect_b32 s61, {WS}, 0", "s_add_u32 s58, s58, s61"]
    def p_lda(self, slot, i, so, special=False):
        r = 32 + slot * 16 + i * 4
        if special:
            return f"buffer_load_dwordx2 {ar(r,2)}, v{116+i}, s[32:35], {so} offen{self.LD}\nbuffer_load_dwordx2 {ar(r+2,2)}, v{116+i}, s[32:35], {so} offen offset:512{self.LD}"
        return f"buffer_load_dwordx4 {ar(r,4)}, v{4+i}, s[32:35], {so} offen{self.LD}"
    def p_loads(self, slot, special=False):
        L = []
        for hb in range(2):
            L.append(f"s_add_u32 m0, s52, {slot*32768 + hb*4096}")
            L.append(self.p_lda(slot, 2 * hb, "s53", special))
            for j in range(4):
                L.append(f"buffer_load_dwordx4 v{8+j}, s[36:39], s{54+hb} offen offset:{1024*j} lds")
                if j == 1: L.append(self.p_lda(slot, 2 * hb + 1, "s53", special))
        return L
    def wo_extra(self):
        d3 = ["\n".join(self.p_nxt())]
        for x in self.p_loads(3):
            if x.startswith("s_"): d3.append(x + "\ns_nop 0")
            elif " lds" in x: d3.append(x)
        raw = []
        for st in range(4):
            L = ["\n".join(self.p_nxt())]
            for b in range(8):
                L.append(f"buffer_load_dwordx4 {ar(96+st*32+b*4,4)}, v{8+(b&3)}, s[36:39], s{54+(b>>2)} offen offset:{1024*(b&3)}")
            raw.append(L)
        return d3, raw
    def wo_main(self, pre=(), late=(), npre_ld=0, fill6=()):
        k = self.k; acc = self.pacc
        k("s_mov_b32 s58, 0\ns_mov_b32 s59, s60")
        def lda(slot): return ["\n".join(self.p_nxt())] + [f"buffer_load_dwordx4 {ar(32+slot*16+i*4,4)}, v{4+i}, s[32:35], s53 offen{self.LD}" for i in range(4)]
        for s_ in range(4):
            for x in lda(s_): k(x)
        k("v_add_u32 v16, s52, v2\nv_add_u32 v17, 0x10000, v16")
        for x in pre: k(x)
        nl = len(late)
        for s_ in range(8):
            slot = s_ % 4; last = s_ == 7
            hi = min(7, max(3, s_ + 2))
            k(f"s_waitcnt vmcnt({4*(hi-s_) + (nl if s_ >= 5 else 0) + (npre_ld if s_ <= 3 else 0)})")
            fill = list(fill6) if s_ == 6 else []
            if 1 <= s_ <= 4:
                ws_ = (s_ - 1) % 4
                fill += lda(ws_)
                fill += [f"ds_write_b128 v{16+(ws_>>1)}, {ar(96+(s_-1)*32+b*4,4)} offset:{(ws_&1)*32768 + b*1024}" for b in range(8)]
                if s_ == 4: fill += list(late)
            fi = 0
            for t in range(8):
                if last: k(f"s_waitcnt lgkmcnt({14 - 2*t})")
                elif t % 2 == 0: k("s_waitcnt lgkmcnt(10)")
                for i in range(4):
                    k(f"v_mfma_f32_16x16x32_bf16 {vr(acc(t,i),4)}, {ar(t*4,4)}, {ar(32+slot*16+i*4,4)}, {vr(acc(t,i),4) if s_ else 0}")
                    if i < 2 and t > 0:
                        if not last: k(self.p_rd((slot + 1) % 4, t - 1)[i])
                    elif fi < len(fill):
                        k(fill[fi]); fi += 1
            assert fi == len(fill), (fi, len(fill))
            if not last:
                for x in self.p_rd((slot + 1) % 4, 7): k(x)
    @staticmethod
    def pacc(t, i): return 128 + (t * 4 + i) * 4
    def p_rd(self, slot, t):
        off = (slot & 1) * 32768 + (t & 1) * 8
        va = (12 if slot < 2 else 24) + (t >> 1)
        return [f"ds_read_b64_tr_b16 {ar(t*4,2)}, v{va} offset:{off}", f"ds_read_b64_tr_b16 {ar(t*4+2,2)}, v{va} offset:{off+4096}"]
    def proj_pre(self, zero=True):
        k = self.k
        for t in range(8):
            for x in self.p_rd(0, t): k(x)
        for u in range(4): k(f"v_add_u32 v{24+u}, 0x10000, v{12+u}")
        if zero:
            for r in range(128): k(f"v_mov_b32 v{128+r}, 0")
    def proj_main(self, NS, pre=(), late=()):
        k = self.k; acc = self.pacc
        sp = self.pHH
        for s_ in range(3):
            for i in range(4): k(self.p_lda(s_, i, f"s{28+s_}", sp))
        for x in pre: k(x)
        def step(slot, wait, loads, cnt=False, last=False, special=False):
            if wait is not None: k(f"s_waitcnt vmcnt({wait})")
            fill = []
            if loads:
                n = self.p_nxt(special)
                fill = ["\n".join(n[0:2]), "\n".join(n[2:4])] + self.p_loads((slot + 3) % 4, special) + ["\n".join(n[4:6]), "\n".join(n[6:])]
            if cnt: fill[-1] += "\ns_sub_u32 s57, s57, 1\ns_cmp_lg_u32 s57, 0"
            fi = 0
            for t in range(8):
                if last: k(f"s_waitcnt lgkmcnt({14 - 2*t})")
                elif t % 2 == 0: k("s_waitcnt lgkmcnt(10)")
                for i in range(4):
                    k(f"v_mfma_f32_16x16x32_bf16 {vr(acc(t,i),4)}, {ar(t*4,4)}, {ar(32+slot*16+i*4,4)}, {vr(acc(t,i),4)}")
                    if i < 2 and t > 0:
                        if not last: k(self.p_rd((slot + 1) % 4, t - 1)[i])
                    elif fi < len(fill):
                        k(fill[fi]); fi += 1
            assert fi == len(fill), (fi, len(fill))
            if not last:
                for x in self.p_rd((slot + 1) % 4, 7): k(x)
        step(0, 16 if sp else 8, True, special=sp)
        nit = (NS - 4) // 4
        if nit > 1:
            k(f"s_mov_b32 s57, {nit}")
            loop = k.label("ploop")
            k(".p2align 6")
            k(f"{loop}:")
        for u in range(4): step((1 + u) % 4, 12, True, cnt=(u == 3 and nit > 1))
        if nit > 1: k(f"s_cbranch_scc1 {loop}")
        for x in late: k(x)
        nl = len(late)
        step(1, 12 + nl, False); step(2, nl, False); step(3, None, False, last=True)
    def proj_reduce(self, extra_reads=None):
        k = self.k; acc = self.pacc
        k("v_add_u32 v16, s52, v2\nv_add_u32 v24, 0x10000, v16")
        for i in range(1, 4): k(f"s_xor_b32 s61, s3, {i}\ns_lshl_b32 s61, s61, 13\ns_add_u32 s61, s61, {(i-1)*32768}\nv_add_u32 v{16+i}, s61, v2")
        for i in range(1, 4):
            for t in range(8): k(f"ds_write_b128 v{16 if i < 3 else 24}, {vr(acc(t,i),4)} offset:{((i-1)&1)*32768 + t*1024}")
        k("s_waitcnt lgkmcnt(0)\ns_barrier")
        if extra_reads: extra_reads()
        for i in range(1, 4):
            for t in range(8): k(f"ds_read_b128 {vr(acc(t,i),4)}, v{16+i} offset:{t*1024}")
        for i in range(1, 4):
            for t in range(8):
                left = 23 - ((i - 1) * 8 + t)
                if left <= 15 or (i == 1 and t == 0): k(f"s_waitcnt lgkmcnt({min(left,15)})")
                for h in range(2): k(f"v_pk_add_f32 {vr(acc(t,0)+2*h,2)}, {vr(acc(t,0)+2*h,2)}, {vr(acc(t,i)+2*h,2)}")
        k("s_barrier")
    def modvec(self, vec, dst):
        for u in range(4):
            for h in range(2): self.k(f"ds_read_b128 {vr(dst+8*u+4*h,4)}, v20 offset:{vec*512 + u*128 + h*16}")

    def attn(self):
        k = self.k
        KVX = 128 * 1024
        PH = 32
        def outq(j, pm, e):
            for d in range(4): k(f"v_cvt_pk_bf16_f32 v{PH+j*8+pm*4+d}, v{e+2*d}, v{e+2*d+1}")
        self.fill_every = 5
        def mid():
            k(f"s_add_u32 s20, s63, {C_S2}")
            self.arrive("s20")
            self.stamp("S2 arrive")
        d3, raw = self.wo_extra()
        NQ = self.opt.get("rawq", 2)
        self.fill_every = 6
        self.featmap(4, 96, 160, 192, 224, 240, outq, d3 + sum(raw[:NQ], []), mid, self.opt.get("mid_at", 150))
        k(f"s_lshl_b32 s14, s63, 1\ns_mul_i32 s14, s14, {KVS}\ns_add_u32 s14, s14, {KVP_OFF}")
        srd_off(k, 16, 4, "s14", 15 * 32 * KVS + 2 * KVS)
        k(f"s_lshr_b32 s12, s3, 1\ns_mul_i32 s12, s12, {KVS}\ns_and_b32 s13, s3, 1\ns_lshl_b32 s13, s13, 11\ns_add_u32 s12, s12, s13")
        k("v_add_u32 v16, s12, v2")
        k(f"v_and_b32 v17, 15, v1\nv_mul_u32_u24 v17, {32*KVS}, v17\nv_lshrrev_b32 v18, 4, v1\nv_lshl_add_u32 v17, v18, 4, v17\nv_add_u32 v17, 4096, v17")
        k(f"s_mov_b32 s15, {KVS}")
        srd_off(k, 24, 4, O_OFF, 4 * MB)
        k(f"s_add_u32 s12, s63, {C_S2}")
        self.stamp("q featmap done")
        self.wait("s12", 16)
        self.stamp("S2 done")
        PR = 128
        def ldp(p):
            k(f"s_add_u32 s12, s62, {p}\ns_and_b32 s12, s12, 15\ns_mul_i32 s12, s12, {32*KVS}")
            k(f"buffer_load_dwordx4 {vr(PR+8*p,4)}, v16, s[16:19], s12 offen{self.LD}")
            k(f"buffer_load_dwordx4 {vr(PR+8*p+4,4)}, v16, s[16:19], s12 offen offset:1024{self.LD}")
        ZF = 64; MR = 112
        def ldx(q):
            if q < 2:
                for pm in range(2): k(f"buffer_load_dwordx4 {vr(ZF+(q*2+pm)*4,4)}, v17, s[16:19], {'s15' if q else '0'} offen offset:{pm*64}{self.LD}")
        AH = self.opt.get("kvahead", 6)
        for p in range(AH): ldp(p)
        SA = 80; T = 96
        for p in range(16):
            issued = min(18, AH + p)
            k(f"s_waitcnt vmcnt({2*(issued-1-p)})")
            nx = AH + p
            if nx < 16: ldp(nx)
            elif nx < 18: ldx(nx - 16)
            for d in range(8):
                if p == 0: unpack(k, SA + 2 * d, SA + 2 * d + 1, PR + d)
                else: unpack(k, T + 2 * d, T + 2 * d + 1, PR + 8 * p + d)
            if p:
                for d in range(8): k(f"v_pk_add_f32 {vr(SA+2*d,2)}, {vr(SA+2*d,2)}, {vr(T+2*d,2)}")
        self.stamp("kv summed")
        rawl = sum(raw[NQ:], [])
        nraw = 8 * (4 - NQ)
        for d in range(8): k(f"v_cvt_pk_bf16_f32 v{T+d}, v{SA+2*d}, v{SA+2*d+1}")
        k(f"s_lshl_b32 s12, s3, 11\ns_add_u32 s12, s12, {KVX}\nv_add_u32 v16, s12, v2")
        k(f"ds_write_b128 v16, {vr(T,4)}\nds_write_b128 v16, {vr(T+4,4)} offset:1024")
        k("s_waitcnt vmcnt(0)")
        for x in rawl: k(x)
        k(f"v_add_u32 v16, {KVX}, v2")
        k("s_waitcnt lgkmcnt(0)\ns_barrier")
        KF = 128
        for f in range(8): k(f"ds_read_b128 {vr(KF+4*f,4)}, v16 offset:{f*1024}")
        OA = 160
        for pm in range(2):
            for j in range(4):
                hh = j >> 1
                d_ = vr(OA + j * 12 + 8, 4)
                k(f"v_mfma_f32_16x16x32_bf16 {d_}, {vr(ZF+(hh*2+pm)*4,4)}, {vr(PH+j*8+pm*4,4)}, {d_ if pm else 0}")
        k("s_waitcnt lgkmcnt(0)")
        for pm in range(2):
            for j in range(4):
                hh = j >> 1
                for dt in range(2):
                    d_ = vr(OA + j * 12 + dt * 4, 4)
                    k(f"v_mfma_f32_16x16x32_bf16 {d_}, {vr(KF+((hh*2+pm)*2+dt)*4,4)}, {vr(PH+j*8+pm*4,4)}, {d_ if pm else 0}")
        DN = lambda j: OA + j * 12 + 8
        for j in range(4): k(f"v_pk_add_f32 {vr(DN(j),2)}, {vr(DN(j),2)}, {vr(DN(j)+2,2)}")
        for j in range(4): k(f"v_add_f32 v{DN(j)}, v{DN(j)}, v{DN(j)+1}")
        for sw in ("v_permlane16_swap_b32", "v_permlane32_swap_b32"):
            for j in range(4): k(f"v_mov_b32 v{DN(j)+1}, v{DN(j)}")
            k("s_nop 1")
            for j in range(4): k(f"{sw} v{DN(j)}, v{DN(j)+1}")
            for j in range(4): k(f"v_add_f32 v{DN(j)}, v{DN(j)}, v{DN(j)+1}")
        for j in range(4): k(f"v_add_f32 v{DN(j)}, 0x358637bd, v{DN(j)}")
        for j in range(4): k(f"v_rcp_f32 v{DN(j)}, v{DN(j)}")
        k("s_lshl_b32 s12, s63, 18\ns_lshl_b32 s13, s62, 13\ns_add_u32 s12, s12, s13\ns_lshl_b32 s13, s3, 11\ns_add_u32 s12, s12, s13\ns_add_u32 s13, s12, 0x20000")
        for j in range(4):
            o_ = OA + j * 12
            for d in range(4): k(f"v_pk_mul_f32 {vr(o_+2*d,2)}, {vr(o_+2*d,2)}, {vr(DN(j),2)} op_sel_hi:[1,0]")
            for d in range(4): k(f"v_cvt_pk_bf16_f32 v{64+4*j+d}, v{o_+2*d}, v{o_+2*d+1}")
            k(f"buffer_store_dwordx4 {vr(64+4*j,4)}, v2, s[24:27], s{12+(j>>1)} offen offset:{(j&1)*1024} sc1")
        self.stamp("o stored")
        self.proj_pre(zero=False)
        k(f"s_add_u32 s20, s62, {C_S3}")
        self.arrive("s20")
        self.stamp("S3 arrive")

    def wo_ln2(self):
        k = self.k; acc = self.pacc
        k("v_and_b32 v21, 15, v1\ns_lshl_b32 s12, s3, 4\nv_add_u32 v21, s12, v21\nv_lshrrev_b32 v22, 4, v1")
        k("v_lshlrev_b32 v23, 11, v21\nv_lshl_add_u32 v23, v22, 4, v23")
        XR = 96
        k(f"v_lshlrev_b32 v20, 5, v22\nv_add_u32 v20, {PERS}, v20")
        GA = 32; MR = 64
        srd_off(k, 16, 4, MODR_OFF, 4 * 16384)
        k("v_lshrrev_b32 v80, 5, v1\nv_and_b32 v81, 31, v1\nv_lshlrev_b32 v81, 4, v81\nv_lshl_add_u32 v81, v80, 12, v81")
        k("s_lshl_b32 s12, s41, 9\ns_and_b32 s13, s3, 1\ns_lshl_b32 s14, s13, 13\ns_add_u32 s12, s12, s14\nv_add_u32 v81, s12, v81")
        k("v_sub_u32 v80, s13, v80\nv_cmp_eq_u32 vcc, 1, v80\ns_nop 1\nv_cndmask_b32 v80, 0, 1.0, vcc")
        k(f"s_lshl_b32 s13, s13, 10\ns_add_u32 s13, s13, {PERS}\nv_add_u32 v82, s13, v2")
        k(f"s_lshr_b32 s20, s40, 1\ns_add_u32 s20, s20, {C_S3}")
        self.wait("s20", 16)
        self.stamp("S3 done")
        k("s_waitcnt lgkmcnt(0)")
        late = []
        pre = [f"v_accvgpr_read_b32 v{XR+d}, a{224+d}" for d in range(16)]
        NT_ = self.opt.get("wtouch", 1)
        if NT_:
            pre += ["s_lshl_b32 s20, s7, 2\ns_add_u32 s20, s20, s3\ns_and_b32 s21, s20, 1\ns_cmp_eq_u32 s21, 0",
                    f"s_cselect_b32 s24, s{P_W1}, s{P_W3}\ns_cselect_b32 s25, s{P_W1+1}, s{P_W3+1}\ns_and_b32 s25, s25, 0xffff\ns_mov_b32 s26, {1024*7168}\ns_mov_b32 s27, 0x20000",
                    f"s_lshr_b32 s21, s20, 1\ns_lshl_b32 s21, s21, 3\ns_add_u32 s21, s21, 256\ns_mul_i32 s21, s21, 7168\ns_mul_i32 s22, s6, 896\ns_add_u32 s21, s21, s22\ns_add_u32 s22, s21, {512*7168}",
                    "v_lshrrev_b32 v112, 3, v1\nv_mul_u32_u24 v112, 7168, v112\nv_and_b32 v113, 7, v1\nv_min_u32 v113, 6, v113\nv_lshl_add_u32 v112, v113, 7, v112"]
            late = ["buffer_load_dword v114, v112, s[24:27], s21 offen", "buffer_load_dword v114, v112, s[24:27], s22 offen"][:NT_]
        pre = [f"s_mov_b32 s12, {p*16384}\nbuffer_load_dwordx4 {vr(MR+4*p,4)}, v81, s[16:19], s12 offen{self.LD}" for p in range(4)] + pre
        f6 = []
        class _L:
            def __call__(self_, x): f6.append(x)
        kk = _L()
        for j in range(4): kk(f"v_add_f32 v{MR+j}, v{MR+j}, v{MR+4+j}\nv_add_f32 v{MR+8+j}, v{MR+8+j}, v{MR+12+j}")
        for j in range(0, 4, 2): kk(f"v_add_f32 v{MR+j}, v{MR+j}, v{MR+8+j}\nv_add_f32 v{MR+j+1}, v{MR+j+1}, v{MR+9+j}")
        t_ = []
        bf16r_pair(t_.append, MR, MR + 1); bf16r_pair(t_.append, MR + 2, MR + 3)
        t_ += [f"v_add_f32 v{MR+j}, v80, v{MR+j}" for j in range(4)]
        bf16r_pair(t_.append, MR, MR + 1); bf16r_pair(t_.append, MR + 2, MR + 3)
        for j in range(0, len(t_), 2): kk("\n".join(t_[j:j + 2]))
        kk(f"ds_write_b128 v82, {vr(MR,4)}")
        self.wo_main(pre=pre, late=late, npre_ld=4, fill6=f6)
        self.stamp("wo loop end")
        self.proj_reduce(extra_reads=lambda: self.modvec(0, GA))
        self.stamp("wo reduced")
        FP = self.opt.get("fdma", 2)
        if FP == 1:
            self.ffn1_setup(); self.ffn1_prefetch()
        X = 64
        for u in range(4):
            for h in range(2):
                for q in range(2):
                    x_ = X + 8 * u + 4 * h + 2 * q
                    unpack(k, x_, x_ + 1, XR + 4 * u + 2 * h + q)
                    k(f"v_pk_fma_f32 {vr(x_,2)}, {vr(GA+8*u+4*h+2*q,2)}, {vr(acc(2*u+h,0)+2*q,2)}, {vr(x_,2)}")
        SB, CB = 128, 160
        self.modvec(1, SB); self.modvec(2, CB)
        for d in range(16):
            k(f"v_cvt_pk_bf16_f32 v{XR+d}, v{X+2*d}, v{X+2*d+1}")
        for d in range(16):
            k(f"v_accvgpr_write_b32 a{240+d}, v{XR+d}")
            unpack(k, X + 2 * d, X + 2 * d + 1, XR + d)
        if self.opt.get("dbg"):
            k(f"s_lshl_b32 s12, s40, 17\ns_lshl_b32 s13, s41, 8\ns_add_u32 s12, s12, s13\ns_sub_u32 s13, {4*MB}, s12\ns_add_u32 s12, s12, {X1_OFF}")
            srd_off(k, 16, 4, "s12", "s13")
            for u in range(4): k(f"buffer_store_dwordx4 {vr(XR+4*u,4)}, v23, s[16:19], 0 offen offset:{64*u}")
        D = 32
        def xred(r, t):
            k(f"v_mov_b32 v{t}, v{r}\ns_nop 1\nv_permlane16_swap_b32 v{r}, v{t}\nv_add_f32 v{r}, v{r}, v{t}")
            k(f"v_mov_b32 v{t}, v{r}\ns_nop 1\nv_permlane32_swap_b32 v{r}, v{t}\nv_add_f32 v{r}, v{r}, v{t}")
        for d in range(8): k(f"v_pk_add_f32 {vr(D+2*d,2)}, {vr(X+4*d,2)}, {vr(X+4*d+2,2)}")
        for st in (4, 2, 1):
            for d in range(st): k(f"v_pk_add_f32 {vr(D+2*d,2)}, {vr(D+2*d,2)}, {vr(D+2*(d+st),2)}")
        k(f"v_add_f32 v16, v{D}, v{D+1}")
        xred(16, 18)
        k("v_mul_f32 v16, 0x3c000000, v16")
        for d in range(16): k(f"v_pk_add_f32 {vr(D+2*d,2)}, {vr(X+2*d,2)}, v[16:17] op_sel_hi:[1,0] neg_lo:[0,1] neg_hi:[0,1]")
        k(f"v_pk_mul_f32 v[18:19], {vr(D,2)}, {vr(D,2)}\nv_pk_mul_f32 v[24:25], {vr(D+2,2)}, {vr(D+2,2)}")
        for d in range(2, 16):
            a_ = 18 if d % 2 == 0 else 24
            k(f"v_pk_fma_f32 {vr(a_,2)}, {vr(D+2*d,2)}, {vr(D+2*d,2)}, {vr(a_,2)}")
        k("v_pk_add_f32 v[18:19], v[18:19], v[24:25]\nv_add_f32 v17, v18, v19")
        xred(17, 18)
        k(f"s_lshl_b32 s12, s40, 12\ns_add_u32 s12, s12, {STAT_OFF}")
        srd_off(k, 16, 4, "s12", 4096)
        k("v_and_b32 v18, 15, v1\nv_lshlrev_b32 v18, 3, v18\ns_lshl_b32 s12, s3, 10\nv_add_u32 v18, s12, v18\nv_lshl_add_u32 v19, v22, 8, v18\ns_lshl_b32 s12, s41, 7")
        k("s_mov_b64 exec, 0xffff")
        k("buffer_store_dwordx2 v[16:17], v18, s[16:19], s12 offen sc1")
        k("s_mov_b64 exec, -1")
        self.stamp("stat pub")
        lp = k.label("spoll"); dn = k.label("sdone")
        k(f"s_mov_b32 s97, 0\ns_mov_b32 s13, {SENT}")
        k(f"{lp}:")
        k("buffer_load_dwordx2 v[24:25], v19, s[16:19], 0 offen sc1")
        k("buffer_load_dwordx2 v[26:27], v19, s[16:19], 0 offen offset:128 sc1")
        k("s_waitcnt vmcnt(0)")
        k("v_cmp_eq_u32 vcc, s13, v25\nv_cmp_eq_u32 s[98:99], s13, v27\ns_nop 1\ns_or_b64 vcc, vcc, s[98:99]")
        k(f"s_cbranch_scc0 {dn}")
        k(f"s_add_u32 s97, s97, 1\ns_cmp_lt_u32 s97, 100000\ns_cbranch_scc1 {lp}")
        k(f"{dn}:")
        self.stamp("stat done")
        k("v_add_f32 v16, v24, v26")
        xred(16, 18)
        k("v_mul_f32 v16, 0x3e000000, v16")
        k("v_sub_f32 v24, v24, v16\nv_sub_f32 v26, v26, v16\nv_mul_f32 v24, v24, v24\nv_fmac_f32 v24, v26, v26")
        k("v_add_f32 v17, v25, v27\nv_fmac_f32 v17, 0x43000000, v24")
        xred(17, 18)
        k("v_mul_f32 v17, 0x3a800000, v17")
        bf16r_pair(k, 16, 17)
        k("v_add_f32 v17, 0x3727c5ac, v17"); bf16r(k, 17)
        k("v_sqrt_f32 v17, v17\ns_nop 0"); bf16r(k, 17)
        k("v_rcp_f32 v18, v17")
        srd_off(k, 16, 4, H2_OFF, 4 * MB)
        k("s_lshl_b32 s12, s41, 19\ns_lshl_b32 s13, s40, 12\ns_add_u32 s12, s12, s13\ns_lshl_b32 s13, s3, 10\ns_add_u32 s12, s12, s13")
        k("s_waitcnt lgkmcnt(0)")
        for u in range(4):
            R = range(4 * u, 4 * u + 4)
            for d in R: k(f"v_pk_add_f32 {vr(X+2*d,2)}, {vr(X+2*d,2)}, v[16:17] op_sel_hi:[1,0] neg_lo:[0,1] neg_hi:[0,1]")
            for d in R: bf16r_pair(k, X + 2 * d, X + 2 * d + 1)
            for d in R: k(f"v_pk_mul_f32 {vr(X+2*d,2)}, {vr(X+2*d,2)}, v[18:19] op_sel_hi:[1,0]")
            for d in R: bf16r_pair(k, X + 2 * d, X + 2 * d + 1)
            for d in R: k(f"v_pk_mul_f32 {vr(X+2*d,2)}, {vr(X+2*d,2)}, {vr(CB+2*d,2)}")
            for d in R: bf16r_pair(k, X + 2 * d, X + 2 * d + 1)
            for d in R: k(f"v_pk_add_f32 {vr(X+2*d,2)}, {vr(X+2*d,2)}, {vr(SB+2*d,2)}")
            for d in R: k(f"v_cvt_pk_bf16_f32 v{32+d}, v{X+2*d}, v{X+2*d+1}")
            k(f"buffer_store_dwordx4 {vr(32+4*u,4)}, v2, s[16:19], s12 offen sc1")
            if u < 3: k("s_add_u32 s12, s12, 0x20000")
        self.stamp("h2 stored")
        if FP != 1: self.ffn1_setup()
        if FP == 0: self.ffn1_prefetch()
        k(f"s_lshr_b32 s20, s40, 2\ns_add_u32 s20, s20, {C_S5}")
        self.arrive("s20", pre=f"s_waitcnt vmcnt({12 if FP == 0 else 0}) lgkmcnt(0)")
        self.stamp("S5 arrive")
        if FP == 2: self.ffn1_prefetch()

    def ffn1_setup(self):
        k = self.k
        WS = self.opt.get("fWS", 4); self.fWS = WS
        STG = 16896
        k("s_and_b32 s61, s7, 3\ns_lshl_b32 s43, s6, 2\ns_add_u32 s43, s43, s61\ns_lshr_b32 s42, s7, 2\ns_and_b32 s56, s43, 1")
        k(f"s_lshl_b32 s60, s61, 1\ns_add_u32 s60, s60, s42\ns_and_b32 s60, s60, {WS-1}")
        k("s_lshl_b32 s61, s3, 12\nv_add_u32 v3, s61, v2")
        k("v_lshrrev_b32 v6, 4, v1\nv_and_b32 v7, 15, v1\nv_lshlrev_b32 v8, 1, v6\nv_xor_b32 v7, v7, v8")
        k("s_lshl_b32 s61, s56, 1\nv_add_u32 v9, s61, v7\nv_subrev_u32 v10, 14, v9\nv_cmp_le_u32 vcc, 14, v9\ns_nop 1\nv_cndmask_b32 v9, v9, v10, vcc")
        k("s_lshl_b32 s61, s3, 3\nv_add_u32 v12, s61, v6\nv_mul_u32_u24 v12, 7168, v12\nv_lshl_add_u32 v4, v9, 4, v12")
        k("v_mov_b32 v10, 0x40000000\nv_cmp_le_u32 vcc, 14, v7\ns_nop 1\nv_cndmask_b32 v4, v4, v10, vcc")
        k(f"v_add_u32 v5, {4*7168 - 2048}, v4")
        k("v_bfe_u32 v7, v1, 2, 2\nv_and_b32 v12, 3, v1\nv_mul_u32_u24 v13, 4224, v6\nv_lshl_add_u32 v13, v7, 8, v13\nv_lshl_add_u32 v13, v12, 3, v13")
        for tl in range(4): k(f"v_xor_b32 v14, {tl}, v7\nv_lshl_add_u32 v{8+tl}, v14, 5, v13")
        k(f"s_lshl_b32 s61, s42, 14\ns_sub_u32 s53, {4*MB}, s61\ns_add_u32 s61, s61, {H2_OFF}")
        srd_off(k, 32, 4, "s61", "s53")
        k(f"s_mul_i32 s61, s43, 224\ns_sub_u32 s53, {1024*7168}, s61")
        srd_off(k, 36, P_W1, "s61", "s53")
        k(f"s_add_u32 s44, s{P_W3}, s61\ns_addc_u32 s45, s{P_W3+1}, 0\ns_sub_u32 s44, s44, 1024\ns_subb_u32 s45, s45, 0\ns_and_b32 s45, s45, 0xffff")
        k("s_add_u32 s46, s53, 1024\ns_mov_b32 s47, 0x20000")
        srd_off(k, 48, 4, HH_OFF, 2048 * 3584 * 2)
        k("s_mul_i32 s52, s3, 4224")
        k("s_mov_b32 s58, 0\ns_mov_b32 s59, s60")
    def ffn1_prefetch(self):
        k = self.k; STG = 16896
        for s_ in range(3):
            for x in self.f_nxt(): k(x)
            k(f"s_mov_b32 s{28+s_}, s53")
            k(f"s_add_u32 m0, s52, {s_*STG}\ns_nop 0")
            for x in self.f_dma(): k(x)
    def f_nxt(self):
        WS = self.fWS
        return ["s_add_u32 s61, s58, s59", "s_lshl_b32 s53, s61, 17", f"s_mul_i32 s54, s61, {32*7168}",
                "s_add_u32 s59, s59, 1", f"s_and_b32 s59, s59, {WS-1}", "s_cmp_eq_u32 s59, s60", f"s_cselect_b32 s61, {WS}, 0", "s_add_u32 s58, s58, s61"]
    def f_dma(self):
        return ["buffer_load_dwordx4 v4, s[36:39], s54 offen lds", "buffer_load_dwordx4 v4, s[44:47], s54 offen offset:1024 lds",
                "buffer_load_dwordx4 v5, s[36:39], s54 offen offset:2048 lds", "buffer_load_dwordx4 v5, s[44:47], s54 offen offset:3072 lds"]
    def ffn1(self):
        k = self.k
        STG = 16896; WF = 0; AR = 64; ACC = 32
        def acc(tt, i): return ACC + (tt * 4 + i) * 4
        def lda(slot, so="s53"): return [f"buffer_load_dwordx4 {ar(AR+slot*16+i*4,4)}, v3, s[32:35], {so} offen offset:{i*1024}{self.LD}" for i in range(4)]
        def rd(slot, tt):
            t, mat = tt >> 1, tt & 1
            o_ = slot * STG + mat * 1024 + (t >> 2) * 128
            return [f"ds_read_b64_tr_b16 {ar(WF+tt*4,2)}, v{8+(t&3)} offset:{o_}", f"ds_read_b64_tr_b16 {ar(WF+tt*4+2,2)}, v{8+(t&3)} offset:{o_+2048}"]
        for r in range(224): k(f"v_mov_b32 v{ACC+r}, 0")
        k("s_lshl_b32 s20, s7, 2\ns_add_u32 s20, s20, s3\ns_lshl_b32 s20, s20, 3\nv_lshrrev_b32 v12, 3, v1\nv_add_u32 v12, s20, v12")
        k("v_and_b32 v13, 7, v1\nv_lshlrev_b32 v12, 11, v12\nv_lshl_add_u32 v12, v13, 7, v12")
        k(f"s_and_b32 s20, s6, 1\ns_lshl_b32 s20, s20, 10\ns_sub_u32 s21, {896*2048}, s20\ns_lshr_b32 s22, s6, 1\ns_mul_i32 s22, s22, {896*2048}\ns_add_u32 s20, s20, s22")
        srd_off(k, 16, P_W2, "s20", "s21")
        PT_ = self.opt.get("ftouch", 0)
        if PT_:
            k("s_lshl_b32 s20, s7, 2\ns_add_u32 s20, s20, s3\ns_and_b32 s21, s20, 1\ns_cmp_eq_u32 s21, 0")
            k(f"s_cselect_b32 s24, s{P_W1}, s{P_W3}\ns_cselect_b32 s25, s{P_W1+1}, s{P_W3+1}\ns_and_b32 s25, s25, 0xffff\ns_mov_b32 s26, {1024*7168}\ns_mov_b32 s27, 0x20000")
            k(f"s_lshr_b32 s21, s20, 2\ns_add_u32 s21, s21, {32*PT_}\ns_mul_i32 s21, s21, 7168\ns_mul_i32 s22, s6, 896\ns_add_u32 s21, s21, s22")
            k("s_and_b32 s22, s20, 2\ns_lshl_b32 s22, s22, 8\ns_add_u32 s23, s21, s22")
            k("v_lshlrev_b32 v13, 7, v1\nv_mov_b32 v14, 0x40000000\nv_cmp_gt_u32 vcc, 4, v1\ns_nop 1\nv_cndmask_b32 v13, v14, v13, vcc")
        k(f"s_add_u32 s20, s42, {C_S5}")
        k("s_waitcnt vmcnt(0)")
        self.wait("s20", 32)
        self.stamp("S5 done")
        for s_ in range(3):
            for x in lda(s_, f"s{28+s_}"): k(x)
        for tt in range(14):
            for x in rd(0, tt): k(x)
        def stage(u, wait, loads, cnt=False, last=False, extra=None):
            ns = (u + 1) % 4; ls = (u + 3) % 4
            if wait is not None:
                k(f"s_waitcnt vmcnt({wait})")
                k("s_barrier")
            fill = []
            if loads:
                n = self.f_nxt()
                d = self.f_dma(); a = lda(ls)
                fill = ["\n".join(n[0:3]), f"s_add_u32 m0, s52, {ls*STG}"] + [d[0], a[0], d[1], a[1], d[2], a[2], d[3], a[3]] + ["\n".join(n[3:5]), "\n".join(n[5:])]
            fill += extra or []
            if cnt: fill.append("s_sub_u32 s57, s57, 1\ns_cmp_lg_u32 s57, 0")
            fi = 0
            for tt in range(14):
                if last: k(f"s_waitcnt lgkmcnt({min(15, 26 - 2*tt)})")
                elif tt % 4 == 0: k("s_waitcnt lgkmcnt(15)")
                for i in range(4):
                    k(f"v_mfma_f32_16x16x32_bf16 {vr(acc(tt,i),4)}, {ar(WF+tt*4,4)}, {ar(AR+u*16+i*4,4)}, {vr(acc(tt,i),4)}")
                    if i < 2 and tt > 0:
                        if not last: k(rd(ns, tt - 1)[i])
                    elif (i == 2 or tt == 0) and fi < len(fill):
                        k(fill[fi]); fi += 1
            assert fi == len(fill)
            if not last:
                for x in rd(ns, 13): k(x)
        k("s_mov_b32 s57, 7")
        if PT_ or self.opt.get("w2t", 1) == 2: k("s_waitcnt vmcnt(0)")
        if self.opt.get("w2t", 1) == 2:
            k("s_mul_hi_u32 s22, s2, 0x2aaaaaab\ns_mul_i32 s22, s22, 6\ns_sub_u32 s22, s2, s22\ns_mul_i32 s23, s3, 6\ns_add_u32 s23, s23, s22\ns_add_u32 s23, s23, 2")
        loop = k.label("floop")
        k(".p2align 6")
        k(f"{loop}:")
        tx = [f"buffer_load_dword a238, v13, s[24:27], s23 offen\ns_add_u32 s23, s23, {32*7168}"] if PT_ else []
        WL = 10 if PT_ else 8
        W2T = self.opt.get("w2t", 1)
        if W2T == 2:
            tx = ["s_sub_u32 s23, s23, 1\ns_cmp_eq_u32 s23, 0\ns_cselect_b32 s22, 0, 0x10000000", "buffer_load_dword a239, v12, s[16:19], s22 offen"]
            WL = 10
        if PT_: pass
        for u in range(4): stage(u, WL, True, u == 3, extra=tx)
        k(f"s_cbranch_scc1 {loop}")
        stage(0, WL, True, extra=["buffer_load_dword a239, v12, s[16:19], 0 offen"] if W2T == 1 else [])
        self.stamp("ffn1 loop end")
        k("s_lshl_b32 s61, s42, 14\nv_add_u32 v16, s61, v3")
        k("s_mul_i32 s12, s43, 7\ns_add_u32 s12, s12, 1\ns_lshr_b32 s12, s12, 1\ns_lshl_b32 s12, s12, 17")
        k("s_add_u32 s13, s12, 0x20000\ns_add_u32 s14, s12, 0x40000\ns_add_u32 s15, s12, 0x60000\ns_sub_u32 s61, s12, 0x1fe00")
        k("s_cmp_eq_u32 s56, 1\ns_cselect_b32 s15, s61, s15")
        k("v_lshlrev_b32 v17, 3, v1\nv_sub_u32 v17, v16, v17")
        k(f"s_mov_b32 s10, {NLOG2E}\ns_mov_b32 s11, {NLOG2E}\ns_mov_b32 s8, 1.0\ns_mov_b32 s9, 1.0")
        XB = 128
        ORD = self.opt.get("ord", [0, 1, 2, 3, 4, 5, 6])
        def wreg(p, sl, mat): return WF + (2 * ORD[p] + mat) * 4 if sl == 1 else XB + (p & 1) * 16 + (sl - 2) * 8 + mat * 4
        def G(p, sl):
            j = ORD[p]
            return [f"v_mfma_f32_16x16x32_bf16 {vr(acc(2*j+mat,i),4)}, {ar(wreg(p,sl,mat),4)}, {ar(AR+sl*16+i*4,4)}, {vr(acc(2*j+mat,i),4)}" for i in range(4) for mat in range(2)]
        def R(p):
            L = []; j = ORD[p]
            for sl in (2, 3):
                for mat in range(2):
                    o_ = sl * STG + mat * 1024 + (j >> 2) * 128; w_ = wreg(p, sl, mat)
                    L += [f"ds_read_b64_tr_b16 {ar(w_,2)}, v{8+(j&3)} offset:{o_}", f"ds_read_b64_tr_b16 {ar(w_+2,2)}, v{8+(j&3)} offset:{o_+2048}"]
            return L
        TM = [20, 24, 12, 4]
        def E(t):
            P1, T1, P2, T2, P3, C = [], [], [], [], [], []
            for i in range(4):
                X, Y = acc(2 * t, i), acc(2 * t + 1, i)
                Tm = TM[i]
                o_ = acc(2 * (t & ~1) + 1, i) + (t & 1) * 2
                P1 += [f"v_pk_mul_f32 {vr(Tm,2)}, {vr(X,2)}, s[10:11]", f"v_pk_mul_f32 {vr(Tm+2,2)}, {vr(X+2,2)}, s[10:11]"]
                T1 += [f"v_exp_f32 v{Tm+r}, v{Tm+r}" for r in range(4)]
                P2 += [f"v_pk_mul_f32 {vr(X,2)}, {vr(X,2)}, {vr(Y,2)}", f"v_pk_mul_f32 {vr(X+2,2)}, {vr(X+2,2)}, {vr(Y+2,2)}",
                       f"v_pk_add_f32 {vr(Tm,2)}, {vr(Tm,2)}, s[8:9]", f"v_pk_add_f32 {vr(Tm+2,2)}, {vr(Tm+2,2)}, s[8:9]"]
                T2 += [f"v_rcp_f32 v{Tm+r}, v{Tm+r}" for r in range(4)]
                P3 += [f"v_pk_mul_f32 {vr(X,2)}, {vr(X,2)}, {vr(Tm,2)}", f"v_pk_mul_f32 {vr(X+2,2)}, {vr(X+2,2)}, {vr(Tm+2,2)}"]
                C += [f"v_cvt_pk_bf16_f32 v{o_}, v{X}, v{X+1}", f"v_cvt_pk_bf16_f32 v{o_+1}, v{X+2}, v{X+3}"]
                if t & 1: C.append(f"buffer_store_dwordx4 {vr(o_-2,4)}, v16, s[48:51], s{12+t//2} offen offset:{1024*i} sc1")
                elif t == 6: C.append(f"buffer_store_dwordx2 {vr(o_,2)}, v17, s[48:51], s15 offen offset:{1024*i} sc1")
            return P1, T1, P2, T2, P3, C
        out = []
        def emit(mf, side):
            n = len(mf); done = 0
            if n == 0: out.extend(side); return
            for q, m_ in enumerate(mf):
                out.append(m_)
                upto = (len(side) * (q + 1) + n - 1) // n
                out.extend(side[done:upto]); done = upto
        out.append("s_waitcnt lgkmcnt(15)")
        emit(G(1, 1) + G(2, 1), [])
        assert max(ORD[1], ORD[2]) <= 2
        out += [f"s_waitcnt vmcnt({1 if W2T == 1 else 0}) lgkmcnt(0)", "s_barrier"]
        emit(G(0, 1), R(0))
        out.append("s_waitcnt lgkmcnt(0)")
        emit(G(0, 2) + G(0, 3), R(1))
        for j in range(7):
            P1, T1, P2, T2, P3, C = E(ORD[j])
            m1 = G(j + 3, 1) if j + 3 <= 6 else []
            m2 = (G(j + 1, 2) + G(j + 1, 3)) if j < 6 else []
            mf = m1 + m2
            out.append("s_waitcnt lgkmcnt(0)")
            if j == 5: out.append("s_barrier")
            rr = R(j + 2) if j + 2 <= 6 else []
            if not mf: out.append("s_nop 7")
            lead = mf[:2]; mf = mf[2:]
            emit(lead, rr[:4])
            out.extend(P1)
            h = len(mf) // 2
            emit(mf[:h], rr[4:] + T1)
            out.extend(P2)
            emit(mf[h:], T2)
            out.extend(P3); out.extend(C)
        check_mfma_valu(out)
        for x in out: k(x)
        pf = self.proj_setup(112, HH_OFF, P_W2, self.opt.get("dWS", 4))
        self.stamp("ffn1 epi end")
        npre = self.opt.get("npre", 0)
        for x in pf[:npre]: k(x)
        nd = sum(1 for x in pf[:npre] if " lds" in x)
        k(f"s_add_u32 s20, s42, {C_S6}")
        self.arrive("s20", pre=f"s_waitcnt vmcnt({nd}) lgkmcnt(0)")
        self.stamp("S6 arrive")
        for x in pf[npre:]: k(x)

    def ffn2(self):
        k = self.k; acc = self.pacc
        k("s_waitcnt vmcnt(16)")
        self.proj_pre()
        k("v_and_b32 v21, 15, v1\ns_lshl_b32 s12, s3, 4\nv_add_u32 v21, s12, v21\nv_lshrrev_b32 v22, 4, v1")
        k("v_lshlrev_b32 v23, 11, v21\nv_lshl_add_u32 v23, v22, 4, v23")
        k(f"v_lshlrev_b32 v20, 5, v22\nv_add_u32 v20, {PERS}, v20")
        GB = 32; X = 64
        k("v_lshlrev_b32 v120, 3, v1")
        for i in range(4): k(f"v_sub_u32 v{116+i}, v{4+i}, v120")
        self.modvec(3, GB)
        for d in range(16):
            k(f"v_accvgpr_read_b32 v{96+d}, a{240+d}")
        for d in range(16): unpack(k, X + 2 * d, X + 2 * d + 1, 96 + d)
        k(f"s_lshl_b32 s12, s40, 17\ns_lshl_b32 s13, s41, 8\ns_add_u32 s12, s12, s13\ns_sub_u32 s13, {4*MB}, s12")
        srd_off(k, 16, P_OUT, "s12", "s13")
        k(f"s_lshr_b32 s20, s40, 2\ns_add_u32 s20, s20, {C_S6}")
        self.wait("s20", 32)
        self.stamp("S6 done")
        k("s_waitcnt lgkmcnt(0)")
        self.proj_main(28)
        self.stamp("ffn2 loop end")
        self.proj_reduce()
        for u in range(4):
            for h in range(2):
                for q in range(2):
                    x_ = X + 8 * u + 4 * h + 2 * q
                    k(f"v_pk_fma_f32 {vr(x_,2)}, {vr(GB+8*u+4*h+2*q,2)}, {vr(acc(2*u+h,0)+2*q,2)}, {vr(x_,2)}")
            for d in range(4): k(f"v_cvt_pk_bf16_f32 v{96+4*u+d}, v{X+8*u+2*d}, v{X+8*u+2*d+1}")
            k(f"buffer_store_dwordx4 {vr(96+4*u,4)}, v23, s[16:19], 0 offen offset:{64*u}")

def build_mega(name="mega_kernel", opt=None):
    opt = opt if opt is not None else {}
    m = M(name, opt)
    m.entry()
    m.p0()
    up = opt.get("upto", 9)
    if up >= 1: m.qkv()
    if up >= 2: m.attn()
    if up >= 3: m.wo_ln2()
    if up >= 4: m.ffn1()
    if up >= 5: m.ffn2()
    return m.finish()

if __name__ == "__main__":
    import json, sys
    NAME = "adaLN_cond__linear_kernel_hedgehog__glu_gated_swiglu__prompt"
    hdr = open(f"cdna_kernels/{NAME}.s.ref").read().split("; Override launch")[0]
    emit_file("mega.s", [build_mega("mega_kernel", {})], header=hdr)
    emit_file("final.s", [build_mega(NAME + "_kernel", {})], header=hdr)
    t = open("final.s").read().replace(f"; @launch kernel={NAME}_kernel grid", "; @launch grid")
    open("final.s", "w").write(t)
    o = {"stamp": 1, "dbg": 1}
    emit_file("mega_st.s", [build_mega("mega_kernel", o)], header=hdr)
    json.dump(o["labels"], open("mega_st.json", "w"))
    import ast
    variants = ast.literal_eval(sys.argv[1]) if len(sys.argv) > 1 else {}
    for nm, ex in variants.items():
        o = dict({"stamp": 1, "dbg": 1}, **ex)
        emit_file(f"mega{nm}_st.s", [build_mega("mega_kernel", o)], header=hdr)
        json.dump(o["labels"], open(f"mega{nm}_st.json", "w"))
```

```python
from asmlib import *
MB = 1 << 20
FLG_OFF = 0
MODP_OFF = 64 * 1024
MODR_OFF = 192 * 1024
STAT_OFF = 512 * 1024
H1_OFF = 1 * MB
O_OFF = 5 * MB
X1_OFF = 9 * MB
H2_OFF = 13 * MB
KVP_OFF = 17 * MB
HH_OFF = 32 * MB
STAMP_OFF = 200 * MB
KVS = 4352
NLOG2E = 0xBFB8AA3B; LOG2E = 0x3FB8AA3B
SENT = 0xBF800000
C_S0, C_S1, C_S2, C_S3, C_S6, C_S5 = 0, 16, 32, 48, 64, 96
C_X = 128
NCNT = 256
XCH_OFF = 48 * MB
P_X, P_WQKV, P_WPHI, P_WO, P_BX, P_W1, P_W3, P_W2, P_C, P_WMOD, P_OUT, P_DBG = [64 + 2 * i for i in range(12)]
PERS = 152 * 1024

def srd(k, d, lo, hi, nrec):
    k(f"s_mov_b32 s{d}, {lo}")
    k(f"s_and_b32 s{d+1}, {hi}, 0xffff")
    k(f"s_mov_b32 s{d+2}, {nrec}")
    k(f"s_mov_b32 s{d+3}, 0x20000")
def srd_off(k, d, base, off, nrec):
    k(f"s_add_u32 s{d}, s{base}, {off}")
    k(f"s_addc_u32 s{d+1}, s{base+1}, 0")
    k(f"s_and_b32 s{d+1}, s{d+1}, 0xffff")
    k(f"s_mov_b32 s{d+2}, {nrec}")
    k(f"s_mov_b32 s{d+3}, 0x20000")
def bf16r_pair(k, lo, hi):
    k(f"v_cvt_pk_bf16_f32 v{hi}, v{lo}, v{hi}")
    k(f"v_lshlrev_b32 v{lo}, 16, v{hi}")
    k(f"v_and_b32 v{hi}, 0xffff0000, v{hi}")
def bf16r(k, r):
    k(f"v_cvt_pk_bf16_f32 v{r}, v{r}, v{r}")
    k(f"v_and_b32 v{r}, 0xffff0000, v{r}")
def unpack(k, lo, hi, src):
    k(f"v_lshlrev_b32 v{lo}, 16, v{src}")
    k(f"v_and_b32 v{hi}, 0xffff0000, v{src}")

import re as _re
def _regs(tok):
    m = _re.fullmatch(r"-?v\[(\d+):(\d+)\]", tok)
    if m: return set(range(int(m.group(1)), int(m.group(2)) + 1))
    m = _re.fullmatch(r"-?v(\d+)", tok)
    return {int(m.group(1))} if m else set()
def check_mfma_valu(L):
    last = {}; pos = 0; ltr = {}
    for x in L:
        op, _, rest = x.partition(" ")
        toks = [t.strip() for t in _re.split(r"[, ]+", rest) if t.strip()]
        if op.startswith("v_mfma"):
            for r in _regs(toks[0]): last[r] = pos
        else:
            allr = set().union(*[_regs(t) for t in toks]) if toks else set()
            for r in allr:
                assert r not in last or pos - last[r] - 1 >= 8, (x, r, pos - last[r] - 1)
            tr = op.startswith(("v_exp", "v_rcp", "v_sqrt"))
            if not tr:
                for r in set().union(*[_regs(t) for t in toks[1:]]) if len(toks) > 1 else set():
                    assert r not in ltr or pos - ltr[r] - 1 >= 1, (x, r)
            if tr:
                for r in _regs(toks[0]): ltr[r] = pos
        pos += (int(rest) + 1) if op == "s_nop" else 1

class M:
    def __init__(self, name, opt):
        self.opt = opt
        self.k = K(name, 256, 256, 160 * 1024, 512, 102, accum=256)
        self.nst = 0
        self.pollv = 0
        self.LD = opt.get("ld", " sc1")
        self.end = self.k.label("end")
    def stamp(self, label=""):
        if not self.opt.get("stamp"): return
        k = self.k
        k("s_memrealtime s[90:91]\ns_memtime s[100:101]\ns_waitcnt lgkmcnt(0)")
        k(f"v_writelane_b32 v31, s90, {self.nst}")
        k(f"v_writelane_b32 v30, s100, {self.nst}")
        self.opt.setdefault("labels", []).append(label)
        self.nst += 1
    def finish(self):
        k = self.k
        if self.opt.get("stamp"):
            k("s_waitcnt vmcnt(0)")
            self.stamp("end")
            srd_off(k, 8, 4, STAMP_OFF, 1 << 20)
            k("s_lshl_b32 s12, s2, 2\ns_add_u32 s12, s12, s3\ns_lshl_b32 s12, s12, 8")
            k("v_lshlrev_b32 v3, 2, v1")
            k("buffer_store_dword v31, v3, s[8:11], s12 offen")
            k("s_add_u32 s12, s12, 0x40000")
            k("buffer_store_dword v30, v3, s[8:11], s12 offen")
        k(f"{self.end}:\ns_endpgm")
        return k
    def arrive(self, cnt_s, pre="s_waitcnt vmcnt(0) lgkmcnt(0)", barrier=True):
        k = self.k
        k(pre)
        if barrier: k("s_barrier")
        sk = k.label("arr")
        k(f"s_cmp_lg_u32 s3, 0\ns_cbranch_scc1 {sk}")
        k(f"s_lshl_b32 s96, {cnt_s}, 8")
        k("v_mov_b32 v28, 1\nv_mov_b32 v29, 0")
        k("s_mov_b64 exec, 1")
        k("buffer_atomic_add v28, v29, s[92:95], s96 offen sc1")
        k("s_mov_b64 exec, -1")
        k(f"{sk}:")
    def wait(self, cnt_s, target, n=1, barrier=True):
        k = self.k
        sk = k.label("wt"); lp = k.label("poll"); dn = k.label("pdone")
        k(f"s_cmp_lg_u32 s3, 0\ns_cbranch_scc1 {sk}")
        k(f"s_lshl_b32 s96, {cnt_s}, 8")
        k(f"v_and_b32 v29, {n-1}, v1\nv_lshlrev_b32 v29, 8, v29")
        k("s_mov_b32 s97, 0")
        k(f"s_mov_b64 exec, {(1 << n) - 1}")
        if self.opt.get("ppoll", 0):
            PV = self.pollv
            k(f"buffer_load_dword v28, v29, s[92:95], s96 offen sc1")
            k(f"s_sleep {self.opt.get('pgap', 8)}")
            k(f"{lp}:")
            for (new, old) in ((PV, 28), (28, PV)):
                k(f"buffer_load_dword v{new}, v29, s[92:95], s96 offen sc1")
                k("s_waitcnt vmcnt(1)")
                k(f"v_cmp_ne_u32 vcc, {target}, v{old}")
                k(f"s_cbranch_vccz {dn}")
            k(f"s_add_u32 s97, s97, 1\ns_cmp_lt_u32 s97, 100000\ns_cbranch_scc1 {lp}")
            k(f"{dn}:")
        else:
            k(f"{lp}:")
            k("buffer_load_dword v28, v29, s[92:95], s96 offen sc1")
            k("s_waitcnt vmcnt(0)")
            k(f"v_cmp_ne_u32 vcc, {target}, v28")
            k(f"s_cbranch_vccz {dn}")
            k(f"s_add_u32 s97, s97, 1\ns_cmp_lt_u32 s97, 100000\ns_cbranch_scc1 {lp}")
            k(f"{dn}:")
        k("s_mov_b64 exec, -1")
        k(f"{sk}:")
        if barrier: k("s_barrier")

    def entry(self):
        k = self.k
        k(f"s_cmp_ge_u32 s2, 256\ns_cbranch_scc1 {self.end}")
        k("s_load_dwordx16 s[64:79], s[0:1], 0")
        k("s_load_dwordx8 s[80:87], s[0:1], 64")
        k("s_load_dwordx2 s[4:5], s[0:1], 96")
        k("v_lshrrev_b32 v3, 6, v0")
        k("v_and_b32 v1, 63, v0")
        k("v_readfirstlane_b32 s3, v3")
        k("v_lshlrev_b32 v2, 4, v1")
        k("s_and_b32 s6, s2, 7\ns_lshr_b32 s7, s2, 3")
        if self.opt.get("stamp"): k("v_mov_b32 v31, 0\nv_mov_b32 v30, 0")

    def gemv_ops(self, W, n, sreg, T, A):
        L = []
        for i in range(n):
            for d in range(4):
                L.append(f"v_lshlrev_b32 v{T+2*d}, 16, v{W+4*i+d}")
                L.append(f"v_and_b32 v{T+2*d+1}, 0xffff0000, v{W+4*i+d}")
            for j in range(0, 8, 2):
                sp = sreg(i); spp = sp & ~1
                if i == 0: L.append(f"v_pk_mul_f32 {vr(A+j,2)}, {vr(T+j,2)}, {vr(spp,2)} " + ("op_sel_hi:[1,0]" if sp % 2 == 0 else "op_sel:[0,1]"))
                else: L.append(f"v_pk_fma_f32 {vr(A+j,2)}, {vr(T+j,2)}, {vr(spp,2)}, {vr(A+j,2)} " + ("op_sel_hi:[1,0,1]" if sp % 2 == 0 else "op_sel:[0,1,0]"))
        L.append("s_nop 1")
        L += [f"v_permlane32_swap_b32 v{A+j}, v{A+4+j}" for j in range(4)]
        L += [f"v_add_f32 v{A+j}, v{A+j}, v{A+4+j}" for j in range(4)]
        L.append("s_nop 1")
        L += [f"v_permlane16_swap_b32 v{A+j}, v{A+2+j}" for j in range(2)]
        L += [f"v_add_f32 v{A+j}, v{A+j}, v{A+2+j}" for j in range(2)]
        L.append("s_nop 1")
        L += [f"v_add_f32_dpp v{A+2+j}, v{A+j}, v{A+j} row_ror:8 row_mask:0xf bank_mask:0xf" for j in range(2)]
        return L
    L_SILU, L_RED, L_ST, L_MOD = 104448, 108544, 110592, 111104
    def p0(self):
        k = self.k; o = self.opt
        L_SILU, L_RED, L_ST, L_MOD = self.L_SILU, self.L_RED, self.L_ST, self.L_MOD
        k("v_and_b32 v3, 7, v0\nv_lshrrev_b32 v19, 3, v0")
        k(f"v_mul_u32_u24 v16, {4*12288}, v19\nv_lshl_add_u32 v16, v3, 4, v16")
        k("v_lshlrev_b32 v17, 3, v0")
        k("v_lshrrev_b32 v10, 3, v1")
        k("v_lshlrev_b32 v18, 11, v3\nv_lshl_add_u32 v18, v10, 4, v18")
        k("s_lshl_b32 s12, s3, 9\nv_add_u32 v18, s12, v18")
        k(f"s_and_b32 s20, s2, 31\ns_lshl_b32 s20, s20, 7\ns_lshr_b32 s21, s2, 5\ns_mul_i32 s22, s21, {128*12288}\ns_add_u32 s22, s20, s22")
        k("s_lshr_b32 s31, s7, 1\ns_lshl_b32 s31, s31, 3\ns_add_u32 s31, s31, s6")
        k("s_and_b32 s57, s7, 1")
        k("s_lshl_b32 s20, s31, 15\ns_cmp_eq_u32 s57, 0\ns_cselect_b32 s23, 32768, 0")
        k("s_waitcnt lgkmcnt(0)")
        self.stamp("start")
        srd(k, 12, f"s{P_WMOD}", f"s{P_WMOD+1}", 1024 * 12288)
        srd(k, 8, f"s{P_C}", f"s{P_C+1}", 2048)
        srd_off(k, 16, P_X, "s20", "s23")
        srd_off(k, 92, 4, FLG_OFF, NCNT * 256)
        nz = k.label("nz")
        k(f"s_lshl_b32 s20, s2, 2\ns_add_u32 s20, s20, s3\ns_cmp_lg_u32 s20, 35\ns_cbranch_scc1 {nz}")
        k("v_mov_b32 v22, 0\nv_lshlrev_b32 v23, 8, v1")
        k("s_mov_b32 s20, 16384")
        k("buffer_store_dword v22, v23, s[92:95], 0 offen sc1")
        k("buffer_store_dword v22, v23, s[92:95], s20 offen sc1")
        k("s_mov_b32 s20, 32768\nbuffer_store_dword v22, v23, s[92:95], s20 offen sc1")
        k("s_mov_b32 s20, 49152\nbuffer_store_dword v22, v23, s[92:95], s20 offen sc1")
        srd(k, 24, f"s{P_DBG}", f"s{P_DBG+1}", 256)
        k("v_mov_b32 v24, 1")
        k("s_waitcnt vmcnt(0)")
        k("buffer_store_dword v24, v22, s[24:27], 0 offen sc1")
        k(f"{nz}:")
        k("buffer_load_dwordx2 v[20:21], v17, s[8:11], 0 offen")
        WC, XR = 32, 48
        for i in range(4):
            k(f"buffer_load_dwordx4 {vr(WC+4*i,4)}, v16, s[12:15], s22 offen nt")
            if i < 3: k("s_add_u32 s22, s22, 12288")
        k("s_mov_b32 s20, 16384")
        for rb in range(2):
            for j in range(4): k(f"buffer_load_dwordx4 {vr(XR+16*rb+4*j,4)}, v18, s[16:19], {'s20' if rb else '0'} offen offset:{128*j} nt")
        k("s_getpc_b64 s[24:25]")
        k(f"{k.name}_pc0:")
        k(f"s_sub_u32 s24, s24, {k.name}_pc0-{k.name}\ns_subb_u32 s25, s25, 0\ns_and_b32 s25, s25, 0xffff")
        k(f"s_mov_b32 s26, {self.end}-{k.name}\ns_mov_b32 s27, 0x20000")
        k("s_lshr_b32 s20, s7, 1\ns_lshl_b32 s20, s20, 13\ns_lshl_b32 s22, s57, 2\ns_add_u32 s22, s22, s3\ns_cmp_eq_u32 s22, 6\ns_cselect_b32 s20, s20, 0x1000000")
        k("v_lshlrev_b32 v22, 7, v1")
        k("buffer_load_dword a253, v22, s[24:27], s20 offen")
        self.qkv_setup()
        srd(k, 24, f"s{P_DBG}", f"s{P_DBG+1}", 256)
        k("s_waitcnt vmcnt(13)")
        S = 112
        unpack(k, S, S + 1, 20); unpack(k, S + 2, S + 3, 21)
        k(f"s_mov_b32 s20, {NLOG2E}")
        for i in range(4): k(f"v_mul_f32 v{S+4+i}, s20, v{S+i}")
        for i in range(4): k(f"v_exp_f32 v{S+4+i}, v{S+4+i}")
        k("s_nop 0")
        for i in range(4): k(f"v_add_f32 v{S+4+i}, 1.0, v{S+4+i}")
        for i in range(4): k(f"v_rcp_f32 v{S+4+i}, v{S+4+i}")
        k("s_nop 0")
        for i in range(4): k(f"v_mul_f32 v{S+i}, v{S+i}, v{S+4+i}")
        bf16r_pair(k, S, S + 1); bf16r_pair(k, S + 2, S + 3)
        k(f"v_lshlrev_b32 v16, 4, v0\nv_add_u32 v16, {L_SILU}, v16")
        k(f"ds_write_b128 v16, {vr(S,4)}")
        k(f"s_lshl_b32 s20, s21, 9\ns_add_u32 s20, s20, {L_SILU}")
        k("v_lshlrev_b32 v16, 4, v19\nv_add_u32 v16, s20, v16")
        k("s_waitcnt lgkmcnt(0)\ns_barrier")
        k(f"ds_read_b128 {vr(S,4)}, v16")
        A = 124; T = 116
        k("v_bfe_u32 v13, v0, 4, 2\nv_lshlrev_b32 v13, 3, v13\nv_lshl_add_u32 v13, v3, 5, v13")
        k(f"s_lshl_b32 s20, s3, 8\ns_add_u32 s20, s20, {L_RED}\nv_add_u32 v13, s20, v13")
        k("s_waitcnt vmcnt(9) lgkmcnt(0)")
        for x in self.gemv_ops(WC, 4, lambda i: S + i, T, A): k(x)
        k(f"ds_write_b64 v13, {vr(A+2,2)}")
        k("s_waitcnt lgkmcnt(0)\ns_barrier")
        nw = k.label("nw")
        k(f"s_cmp_lg_u32 s3, 0\ns_cbranch_scc1 {nw}")
        k(f"v_lshlrev_b32 v18, 2, v1\nv_add_u32 v17, {L_RED}, v18")
        for w in range(4): k(f"ds_read_b32 v{20+w}, v17 offset:{256*w}")
        k(f"s_lshl_b32 s20, s21, 13\ns_and_b32 s22, s2, 31\ns_lshl_b32 s22, s22, 8\ns_add_u32 s20, s20, s22\ns_add_u32 s20, s20, {MODP_OFF}")
        srd_off(k, 8, 4, "s20", 256)
        k("v_mov_b32 v24, 0")
        k("s_waitcnt lgkmcnt(0)")
        k("v_add_f32 v20, v20, v21\nv_add_f32 v22, v22, v23\nv_add_f32 v20, v20, v22")
        k("buffer_store_dword v20, v18, s[8:11], 0 offen sc1")
        rl = k.label("rdy"); rd = k.label("rdyd")
        k("s_mov_b32 s97, 0")
        k(f"{rl}:")
        k("buffer_load_dword v25, v24, s[24:27], 0 offen sc1")
        k("s_waitcnt vmcnt(0)")
        k("v_cmp_ne_u32 vcc, 1, v25")
        k(f"s_cbranch_vccz {rd}")
        k(f"s_add_u32 s97, s97, 1\ns_cmp_lt_u32 s97, 100000\ns_cbranch_scc1 {rl}")
        k(f"{rd}:")
        k("s_and_b32 s20, s2, 15")
        self.arrive("s20", pre="s_nop 0", barrier=False)
        k(f"{nw}:")
        self.stamp("S0 arrive")
        prole = k.label("prole"); join = k.label("join")
        k(f"s_cmp_lg_u32 s57, 0\ns_cbranch_scc1 {prole}")
        nst0 = self.nst
        k("s_waitcnt vmcnt(1)")
        pf = self.qkv_prefetch()
        k0 = k; cnt = [0]
        def k(s_):
            k0(s_); cnt[0] += 1
            if pf and cnt[0] % o.get("lpf", 8) == 0: k0(pf.pop(0))
        X = 128; D = 192
        def xreduce(regs, tmps):
            k("s_nop 1")
            for r in regs: k(f"v_add_f32_dpp v{r}, v{r}, v{r} row_ror:8 row_mask:0xf bank_mask:0xf")
            for sw in ("v_permlane16_swap_b32", "v_permlane32_swap_b32"):
                for r, t in zip(regs, tmps): k(f"v_mov_b32 v{t}, v{r}")
                k("s_nop 1")
                for r, t in zip(regs, tmps): k(f"{sw} v{r}, v{t}")
                for r, t in zip(regs, tmps): k(f"v_add_f32 v{r}, v{r}, v{t}")
        for d in range(32): unpack(k, X + 2 * d, X + 2 * d + 1, XR + d)
        ST_ = [16, 20]
        for rb in range(2):
            x_, d_ = X + 32 * rb, D + 32 * rb
            for d in range(8): k(f"v_pk_add_f32 {vr(d_+2*d,2)}, {vr(x_+4*d,2)}, {vr(x_+4*d+2,2)}")
            for st in (4, 2, 1):
                for d in range(st): k(f"v_pk_add_f32 {vr(d_+2*d,2)}, {vr(d_+2*d,2)}, {vr(d_+2*(d+st),2)}")
            k(f"v_add_f32 v{ST_[rb]}, v{d_}, v{d_+1}")
        xreduce([16, 20], [18, 22])
        k("v_mul_f32 v16, 0x3b800000, v16\nv_mul_f32 v20, 0x3b800000, v20")
        for rb in range(2):
            x_, d_ = X + 32 * rb, D + 32 * rb
            for d in range(16): k(f"v_pk_add_f32 {vr(d_+2*d,2)}, {vr(x_+2*d,2)}, {vr(ST_[rb],2)} op_sel_hi:[1,0] neg_lo:[0,1] neg_hi:[0,1]")
            k(f"v_pk_mul_f32 v[24:25], {vr(d_,2)}, {vr(d_,2)}\nv_pk_mul_f32 v[26:27], {vr(d_+2,2)}, {vr(d_+2,2)}")
            for d in range(2, 16): k(f"v_pk_fma_f32 {vr(24+2*(d&1),2)}, {vr(d_+2*d,2)}, {vr(d_+2*d,2)}, {vr(24+2*(d&1),2)}")
            k(f"v_pk_add_f32 v[24:25], v[24:25], v[26:27]\nv_add_f32 v{ST_[rb]+1}, v24, v25")
        xreduce([17, 21], [18, 22])
        k(f"v_lshlrev_b32 v13, 5, v3\nv_add_u32 v13, {L_ST}, v13")
        k("s_lshl_b32 s20, s3, 3\nv_add_u32 v18, s20, v13")
        k("ds_write_b64 v18, v[16:17]\nds_write_b64 v18, v[20:21] offset:256")
        k("s_waitcnt lgkmcnt(0)\ns_barrier")
        for rb in range(2): k(f"ds_read_b128 {vr(32+8*rb,4)}, v13 offset:{256*rb}\nds_read_b128 {vr(36+8*rb,4)}, v13 offset:{256*rb+16}")
        k("s_waitcnt lgkmcnt(0)")
        for rb in range(2):
            b_ = 32 + 8 * rb; m_ = 16 + 4 * rb
            k(f"v_pk_add_f32 {vr(m_,2)}, {vr(b_,2)}, {vr(b_+2,2)}\nv_pk_add_f32 v[26:27], {vr(b_+4,2)}, {vr(b_+6,2)}\nv_pk_add_f32 {vr(m_,2)}, {vr(m_,2)}, v[26:27]")
            k(f"v_mul_f32 v{m_}, 0x3e800000, v{m_}")
            k("v_mov_b32 v26, 0")
            for w in range(4): k(f"v_sub_f32 v27, v{b_+2*w}, v{m_}\nv_fmac_f32 v26, v27, v27")
            k(f"v_fmac_f32 v{m_+1}, 0x43800000, v26")
            k(f"v_mul_f32 v{m_+1}, 0x3a800000, v{m_+1}")
            bf16r_pair(k, m_, m_ + 1)
            k(f"v_add_f32 v{m_+1}, 0x3727c5ac, v{m_+1}"); bf16r(k, m_ + 1)
            k(f"v_sqrt_f32 v{m_+1}, v{m_+1}\ns_nop 0"); bf16r(k, m_ + 1)
            k(f"v_rcp_f32 v{m_+2}, v{m_+1}")
        for rb in range(2):
            x_ = X + 32 * rb; m_ = 16 + 4 * rb
            for d in range(16): k(f"v_pk_add_f32 {vr(x_+2*d,2)}, {vr(x_+2*d,2)}, {vr(m_,2)} op_sel_hi:[1,0] neg_lo:[0,1] neg_hi:[0,1]")
            for d in range(16): bf16r_pair(k, x_ + 2 * d, x_ + 2 * d + 1)
            for d in range(16): k(f"v_pk_mul_f32 {vr(x_+2*d,2)}, {vr(x_+2*d,2)}, {vr(m_+2,2)} op_sel_hi:[1,0]")
            for d in range(16): bf16r_pair(k, x_ + 2 * d, x_ + 2 * d + 1)
        assert not pf
        k = k0
        srd_off(k, 8, 4, MODP_OFF, 8 * 8192)
        k("v_add_u32 v16, 4096, v2")
        k(f"s_lshl_b32 s20, s3, 11\ns_add_u32 s20, s20, {L_MOD}")
        k("v_add_u32 v18, s20, v2")
        k("v_lshlrev_b32 v24, 5, v10\nv_add_u32 v24, s20, v24")
        srd_off(k, 24, 4, H1_OFF, 4 * MB)
        k("v_lshrrev_b32 v19, 2, v10\nv_lshlrev_b32 v19, 17, v19\nv_and_b32 v25, 3, v10\nv_lshl_add_u32 v19, v25, 8, v19\nv_lshl_add_u32 v19, v3, 4, v19")
        k("s_lshl_b32 s22, s3, 20\ns_lshl_b32 s21, s31, 10\ns_add_u32 s22, s22, s21")
        k("s_lshl_b32 s21, s3, 10")
        k(f"s_mov_b32 s20, {C_S0}")
        self.stamp("ln1 pre done")
        self.wait("s20", 16, 16)
        self.stamp("S0 done")
        MP = 32
        for p in range(8):
            k(f"buffer_load_dwordx4 {vr(MP+8*p,4)}, v2, s[8:11], s21 offen{self.LD}")
            k(f"buffer_load_dwordx4 {vr(MP+8*p+4,4)}, v16, s[8:11], s21 offen{self.LD}")
            if p < 7: k("s_add_u32 s21, s21, 8192")
        for p in range(1, 8):
            k(f"s_waitcnt vmcnt({14-2*p})")
            for h in range(4): k(f"v_pk_add_f32 {vr(MP+2*h,2)}, {vr(MP+2*h,2)}, {vr(MP+8*p+2*h,2)}")
        for h in range(4): bf16r_pair(k, MP + 2 * h, MP + 2 * h + 1)
        for j in range(4, 8): k(f"v_add_f32 v{MP+j}, 1.0, v{MP+j}")
        for h in range(2, 4): bf16r_pair(k, MP + 2 * h, MP + 2 * h + 1)
        k(f"ds_write_b128 v18, {vr(MP,4)}\nds_write_b128 v18, {vr(MP+4,4)} offset:1024")
        SH, SC = 32, 64
        k("s_waitcnt lgkmcnt(0)")
        for j in range(4):
            for h in range(2): k(f"ds_read_b128 {vr(SC+8*j+4*h,4)}, v24 offset:{1024+256*j+16*h}")
            for h in range(2): k(f"ds_read_b128 {vr(SH+8*j+4*h,4)}, v24 offset:{256*j+16*h}")
        for j in range(4):
            R = range(4 * j, 4 * j + 4)
            k(f"s_waitcnt lgkmcnt({12-4*j})")
            for rb in range(2):
                x_ = X + 32 * rb; o_ = 96 + 16 * rb
                for d in R: k(f"v_pk_mul_f32 {vr(x_+2*d,2)}, {vr(x_+2*d,2)}, {vr(SC+2*d,2)}")
                for d in R: bf16r_pair(k, x_ + 2 * d, x_ + 2 * d + 1)
                for d in R: k(f"v_pk_add_f32 {vr(x_+2*d,2)}, {vr(x_+2*d,2)}, {vr(SH+2*d,2)}")
                for d in R: k(f"v_cvt_pk_bf16_f32 v{o_+d}, v{x_+2*d}, v{x_+2*d+1}")
                k(f"buffer_store_dwordx4 {vr(o_+4*j,4)}, v19, s[24:27], s22 offen offset:{128*rb} sc1")
            if j < 3: k("s_add_u32 s22, s22, 0x40000")
        self.stamp("h1 stored")
        self.qkv_pre()
        k(f"s_lshr_b32 s20, s31, 3\ns_add_u32 s20, s20, {C_S1}")
        self.arrive("s20")
        self.stamp("S1 arrive")
        k(f"s_branch {join}")
        k(f"{prole}:")
        nst1 = self.nst; self.nst = nst0; nlab = len(o.get("labels", []))
        k("s_barrier")
        for x in self.qkv_prefetch(): k(x)
        k(f"s_and_b32 s20, s31, 63\ns_lshl_b32 s20, s20, 7\ns_lshr_b32 s23, s31, 6\ns_mul_i32 s22, s23, {512*12288}\ns_add_u32 s22, s22, s20\ns_add_u32 s22, s22, 4096")
        k("v_mul_u32_u24 v16, 12288, v19\nv_lshl_add_u32 v16, v3, 4, v16")
        WR = 132; SR = 96
        for j in range(16):
            k(f"buffer_load_dwordx4 {vr(WR+4*j,4)}, v16, s[12:15], s22 offen nt")
            if j < 15: k(f"s_add_u32 s22, s22, {32*12288}")
        QT = o.get('qtouch', 512)
        NTQ = 3 if QT else 0
        if QT:
            k("s_lshr_b32 s20, s7, 1\ns_lshl_b32 s20, s20, 2\ns_add_u32 s20, s20, s3\ns_lshl_b32 s20, s20, 4")
            k(f"s_add_u32 s20, s20, {o.get('qt0', 0)}")
            k("v_lshrrev_b32 v17, 2, v1\nv_add_u32 v17, s20, v17\nv_mul_u32_u24 v17, 6144, v17\nv_lshl_add_u32 v17, v15, 7, v17")
            srd(k, 8, f"s{P_WQKV}", f"s{P_WQKV+1}", QT * 6144)
            k("s_lshr_b32 s20, s6, 1\ns_lshl_b32 s20, s20, 9")
            for seg in range(3):
                k(f"buffer_load_dword a{250+seg}, v17, s[8:11], s20 offen")
                if seg < 2: k("s_add_u32 s20, s20, 2048")
        k(f"s_lshl_b32 s20, s23, 11\ns_add_u32 s20, s20, {L_SILU}\nv_lshlrev_b32 v16, 2, v19\nv_add_u32 v16, s20, v16")
        for j in range(16): k(f"ds_read_b32 v{SR+j}, v16 offset:{128*j}")
        n2 = k.label("n2")
        k(f"s_cmp_lg_u32 s3, 2\ns_cbranch_scc1 {n2}")
        k(f"s_lshl_b32 s20, s31, 10\ns_add_u32 s20, s20, {STAT_OFF}")
        srd_off(k, 24, 4, "s20", 1024)
        k(f"v_mov_b32 v20, 0\nv_mov_b32 v21, {SENT}\nv_mov_b32 v22, 0\nv_mov_b32 v23, {SENT}")
        k("buffer_store_dwordx4 v[20:23], v2, s[24:27], 0 offen sc1")
        k(f"{n2}:")
        self.stamp(); self.stamp()
        k("s_waitcnt lgkmcnt(0)")
        g = self.gemv_ops(WR, 16, lambda i: SR + i, T, A)
        for i in range(16):
            k(f"s_waitcnt vmcnt({15-i+NTQ})")
            for x in g[12 * i:12 * i + 12]: k(x)
        for x in g[192:]: k(x)
        k(f"ds_write_b64 v13, {vr(A+2,2)} offset:1024")
        k("s_waitcnt lgkmcnt(0)\ns_barrier")
        n1 = k.label("n1")
        k(f"s_cmp_lg_u32 s3, 1\ns_cbranch_scc1 {n1}")
        k(f"v_lshlrev_b32 v18, 2, v1\nv_add_u32 v17, {L_RED+1024}, v18")
        for w in range(4): k(f"ds_read_b32 v{20+w}, v17 offset:{256*w}")
        k(f"s_lshl_b32 s20, s31, 8\ns_add_u32 s20, s20, {MODR_OFF}")
        srd_off(k, 24, 4, "s20", 256)
        k("s_waitcnt lgkmcnt(0)")
        k("v_add_f32 v20, v20, v21\nv_add_f32 v22, v22, v23\nv_add_f32 v20, v20, v22")
        k("buffer_store_dword v20, v18, s[24:27], 0 offen sc1")
        k(f"{n1}:")
        self.stamp()
        self.qkv_pre()
        self.stamp()
        assert self.nst == nst1
        if "labels" in o: del o["labels"][nlab:]
        k(f"{join}:")

    def featmap(self, n, PT, EP, EM, ST, SM, emit_out, fill=None, mid=None, mid_at=0):
        k0 = self.k
        fill = list(fill or [])
        cnt = [0]
        def k(s):
            k0(s)
            cnt[0] += 1
            if mid and cnt[0] == mid_at: mid()
            if fill and cnt[0] > mid_at and cnt[0] % self.fill_every == 0 and not s.startswith("s_nop"): k0(fill.pop(0))
        for g in range(n):
            p = PT + g * 8
            for d in range(4): k(f"v_cvt_pk_bf16_f32 v{p+2*d+1}, v{p+2*d}, v{p+2*d+1}")
            for d in range(4):
                k(f"v_lshlrev_b32 v{p+2*d}, 16, v{p+2*d+1}")
                k(f"v_and_b32 v{p+2*d+1}, 0xffff0000, v{p+2*d+1}")
        X = lambda j: ST + 4 * j
        Y = lambda j: ST + 4 * j + 2
        for j in range(n):
            p = PT + j * 8; t = X(j) + 1; t2 = Y(j) + 1
            k(f"v_max3_f32 v{X(j)}, v{p}, v{p+1}, v{p+2}")
            k(f"v_max3_f32 v{t}, v{p+3}, v{p+4}, v{p+5}")
            k(f"v_max3_f32 v{Y(j)}, -v{p}, -v{p+1}, -v{p+2}")
            k(f"v_max3_f32 v{t2}, -v{p+3}, -v{p+4}, -v{p+5}")
            k(f"v_max3_f32 v{X(j)}, v{X(j)}, v{p+6}, v{p+7}")
            k(f"v_max3_f32 v{Y(j)}, v{Y(j)}, -v{p+6}, -v{p+7}")
            k(f"v_max_f32 v{X(j)}, v{X(j)}, v{t}")
            k(f"v_max_f32 v{Y(j)}, v{Y(j)}, v{t2}")
        def allred(op, post):
            k("s_nop 1")
            for j in range(n): k(f"v_permlane16_swap_b32 v{X(j)}, v{Y(j)}")
            for j in range(n): k(f"{op} v{X(j)}, v{X(j)}, v{Y(j)}")
            for j in range(n): k(f"v_mov_b32 v{Y(j)}, v{X(j)}")
            k("s_nop 1")
            for j in range(n): k(f"v_permlane32_swap_b32 v{X(j)}, v{Y(j)}")
            for j in range(n): k(f"{op} v{X(j)}, v{X(j)}, v{Y(j)}")
            for j in range(n): k(post(X(j)))
            k("s_nop 0")
            for j in range(n): k(f"v_mov_b32 v{Y(j)}, v{X(j)}")
            k("s_nop 1")
            for j in range(n): k(f"v_permlane16_swap_b32 v{X(j)}, v{Y(j)}")
        allred("v_max_f32", lambda r: f"v_mul_f32 v{r}, s10, v{r}")
        for j in range(n):
            p = PT + j * 8
            for d in range(4):
                k(f"v_pk_fma_f32 {vr(EP+j*8+2*d,2)}, {vr(p+2*d,2)}, s[8:9], {vr(X(j),2)} op_sel_hi:[1,1,0]")
                k(f"v_pk_fma_f32 {vr(EM+j*8+2*d,2)}, {vr(p+2*d,2)}, s[10:11], {vr(Y(j),2)} op_sel_hi:[1,1,0]")
            for d in range(8):
                k(f"v_exp_f32 v{EP+j*8+d}, v{EP+j*8+d}")
                k(f"v_exp_f32 v{EM+j*8+d}, v{EM+j*8+d}")
        k("s_nop 0")
        for j in range(n):
            for q, E in enumerate((EP, EM)):
                e = E + j * 8; t = SM + 4 * q
                k(f"v_pk_add_f32 {vr(t,2)}, {vr(e,2)}, {vr(e+2,2)}")
                k(f"v_pk_add_f32 {vr(t+2,2)}, {vr(e+4,2)}, {vr(e+6,2)}")
            for q in range(2):
                t = SM + 4 * q
                k(f"v_pk_add_f32 {vr(t,2)}, {vr(t,2)}, {vr(t+2,2)}")
            for q, R in enumerate((X(j), Y(j))):
                t = SM + 4 * q
                k(f"v_add_f32 v{R}, v{t}, v{t+1}")
        allred("v_add_f32", lambda r: f"v_rcp_f32 v{r}, v{r}")
        for j in range(n):
            for pm, (E, R) in enumerate(((EP, X(j)), (EM, Y(j)))):
                e = E + j * 8
                for d in range(4): k(f"v_pk_mul_f32 {vr(e+2*d,2)}, {vr(e+2*d,2)}, {vr(R,2)} op_sel_hi:[1,0]")
                emit_out(j, pm, e)
        for f in fill: k0(f)

    def qkv_setup(self):
        k = self.k; o = self.opt
        REG = 3136; STG = 8 * REG; WPHI = 4 * STG
        WS = o.get("qWS", 4)
        k("s_and_b32 s58, s7, 7\ns_lshr_b32 s59, s7, 3")
        k("s_and_b32 s61, s6, 1\ns_lshl_b32 s61, s61, 3\ns_add_u32 s62, s61, s58")
        k("s_lshr_b32 s61, s6, 1\ns_lshl_b32 s61, s61, 2\ns_add_u32 s63, s61, s59")
        k(f"s_lshl_b32 s60, s59, 1\ns_add_u32 s60, s60, s58\ns_and_b32 s60, s60, {WS-1}")
        k("s_lshl_b32 s61, s3, 11\nv_add_u32 v4, s61, v2")
        k("s_lshl_b32 s61, s3, 10\nv_add_u32 v12, s61, v2")
        k("v_lshrrev_b32 v6, 3, v1\nv_and_b32 v7, 7, v1\nv_bfe_u32 v8, v1, 4, 1\nv_lshlrev_b32 v8, 1, v8\nv_xor_b32 v7, v7, v8")
        k("s_lshl_b32 s61, s3, 3\nv_add_u32 v6, s61, v6\nv_mul_u32_u24 v6, 6144, v6\nv_lshl_add_u32 v5, v7, 4, v6")
        k("v_lshrrev_b32 v11, 4, v1\nv_bfe_u32 v14, v1, 2, 2\nv_and_b32 v15, 3, v1")
        k(f"v_mul_u32_u24 v9, {REG}, v11\nv_lshl_add_u32 v9, v14, 7, v9\nv_lshl_add_u32 v9, v15, 3, v9")
        k("v_lshrrev_b32 v8, 1, v14\nv_lshl_add_u32 v6, v8, 5, v9\nv_xor_b32 v8, 1, v8\nv_lshl_add_u32 v7, v8, 5, v9")
        k(f"v_add_u32 v8, {2*STG}, v6\nv_add_u32 v9, {2*STG}, v7")
        k(f"s_lshl_b32 s61, s62, 13\ns_sub_u32 s53, {4*MB}, s61\ns_add_u32 s61, s61, {H1_OFF}")
        srd_off(k, 32, 4, "s61", "s53")
        for seg in range(3):
            k(f"s_lshl_b32 s61, s63, 7\ns_add_u32 s61, s61, {1024*seg}\ns_sub_u32 s53, {1024*6144}, s61")
            srd_off(k, 36 + 4 * seg, P_WQKV, "s61", "s53")
        k("s_lshl_b32 s61, s63, 12")
        srd_off(k, 48, P_WPHI, "s61", 4096)
        k(f"s_mul_i32 s52, s3, {REG}")
        self.q = dict(REG=REG, STG=STG, WPHI=WPHI, WS=WS)
        k("s_mov_b32 s58, 0\ns_mov_b32 s59, s60")
    def qkv_prefetch(self):
        WPHI = self.q["WPHI"]
        pf = []
        for s_ in range(3):
            pf.append("\n".join(self.q_nxt() + [f"s_mov_b32 s{28+s_}, s53"]))
            for x in self.q_loads(s_):
                if x.startswith("s_"): pf.append(x + "\ns_nop 0")
                elif " lds" in x: pf.append(x)
        pf.append(f"s_lshl_b32 s61, s3, 10\ns_add_u32 m0, s61, {WPHI}\ns_nop 0\nbuffer_load_dwordx4 v12, s[48:51], 0 offen lds")
        return pf
    def q_nxt(self):
        WS = self.q["WS"]
        return ["s_add_u32 s61, s58, s59", "s_lshl_b32 s53, s61, 18", f"s_mul_i32 s54, s61, {64*6144}",
                "s_add_u32 s55, s53, 0x20000", f"s_add_u32 s56, s54, {32*6144}",
                "s_add_u32 s59, s59, 1", f"s_and_b32 s59, s59, {WS-1}", "s_cmp_eq_u32 s59, s60", f"s_cselect_b32 s61, {WS}, 0", "s_add_u32 s58, s58, s61"]
    def q_loads(self, slot):
        REG, STG = self.q["REG"], self.q["STG"]; AR = 64
        L = []
        for u in range(2):
            L.append(f"s_add_u32 m0, s52, {slot*STG + u*4*REG}")
            L.append(f"buffer_load_dwordx4 {ar(AR+slot*16+u*8,4)}, v4, s[32:35], s{53+2*u} offen{self.LD}")
            for seg in range(3):
                L.append(f"buffer_load_dwordx4 v5, s[{36+4*seg}:{39+4*seg}], s{54+2*u} offen offset:{1024*seg} lds")
            L.append(f"buffer_load_dwordx4 {ar(AR+slot*16+u*8+4,4)}, v4, s[32:35], s{53+2*u} offen offset:1024{self.LD}")
        return L
    def qkv_pre(self):
        k = self.k
        WPHI = self.q["WPHI"]; PKP, VP = 144, 80; PKO = WPHI + 4096; VO = PKO + 36864
        k(f"v_lshrrev_b32 v13, 2, v1\nv_lshlrev_b32 v13, 6, v13\nv_lshl_add_u32 v13, v15, 3, v13\nv_add_u32 v13, {WPHI}, v13")
        k("v_and_b32 v16, 15, v1\ns_lshl_b32 s61, s3, 5\nv_add_u32 v17, s61, v16")
        k(f"v_mul_u32_u24 v18, {PKP}, v17\nv_lshl_add_u32 v18, v11, 4, v18\nv_add_u32 v18, {PKO}, v18")
        k(f"v_mul_u32_u24 v19, {VP}, v17\nv_lshl_add_u32 v19, v11, 3, v19\nv_add_u32 v19, {VO}, v19")
        k("v_lshl_add_u32 v17, v11, 3, v14")
        k("s_lshr_b32 s12, s3, 1\ns_and_b32 s13, s3, 1")
        k(f"s_mul_i32 s14, s12, 18432\ns_lshl_b32 s15, s13, 6\ns_add_u32 s14, s14, s15\ns_add_u32 s14, s14, {PKO}")
        k(f"v_mul_u32_u24 v20, {PKP}, v17\nv_lshl_add_u32 v20, v15, 4, v20\nv_add_u32 v20, s14, v20")
        k(f"s_mul_i32 s14, s12, 10240\ns_add_u32 s14, s14, {VO}")
        k(f"v_mul_u32_u24 v21, {VP}, v17\nv_lshl_add_u32 v21, v15, 3, v21\nv_add_u32 v21, s14, v21")
        k(f"s_lshl_b32 s14, s62, 5\ns_lshl_b32 s15, s63, 1\ns_add_u32 s14, s14, s15\ns_add_u32 s14, s14, s12\ns_mul_i32 s14, s14, {KVS}\ns_add_u32 s14, s14, {KVP_OFF}")
        srd_off(k, 16, 4, "s14", KVS)
        k("s_lshl_b32 s14, s13, 11\nv_add_u32 v22, s14, v2")
        k("v_lshlrev_b32 v23, 13, v16\nv_lshl_add_u32 v23, v11, 4, v23\ns_lshl_b32 s14, s13, 6\ns_add_u32 s14, s14, 4096\nv_add_u32 v23, s14, v23")
        k(f"s_mov_b32 s8, {LOG2E}\ns_mov_b32 s9, {LOG2E}\ns_mov_b32 s10, {NLOG2E}\ns_mov_b32 s11, {NLOG2E}")
        for r in range(4): k(f"v_mov_b32 v{24+r}, 0x3f803f80")
        k("s_lshl_b32 s20, s7, 2\ns_add_u32 s20, s20, s3\ns_lshl_b32 s20, s20, 3\nv_lshrrev_b32 v56, 3, v1\nv_add_u32 v56, s20, v56")
        k("v_mul_u32_u24 v57, 7168, v56\nv_lshl_add_u32 v57, v3, 7, v57\nv_lshlrev_b32 v56, 11, v56\nv_lshl_add_u32 v56, v3, 7, v56")
    def qkv(self):
        k = self.k; o = self.opt
        REG, STG, WPHI = self.q["REG"], self.q["STG"], self.q["WPHI"]
        WF = 0; AR = 64; ACC = 160
        def acc(tt, i): return ACC + (tt * 2 + i) * 4
        def rd(slot, u, tt):
            seg, t = tt >> 2, tt & 3
            off = (slot & 1) * STG + u * 4 * REG + seg * 1024 + (t >> 1) * 64
            va = 6 + (t & 1) + 2 * (slot >> 1)
            return [f"ds_read_b64_tr_b16 {ar(WF+tt*4,2)}, v{va} offset:{off}", f"ds_read_b64_tr_b16 {ar(WF+tt*4+2,2)}, v{va} offset:{off+512}"]
        PKP, VP = 144, 80
        PKO = WPHI + 4096; VO = PKO + 36864
        k(f"s_add_u32 s20, s62, {C_S1}")
        k("s_waitcnt vmcnt(0)")
        self.wait("s20", 8)
        self.stamp("S1 done")
        for s_ in range(3):
            k(f"s_add_u32 s61, s{28+s_}, 0x20000")
            for u in range(2):
                so = f"s{28+s_}" if u == 0 else "s61"
                k(f"buffer_load_dwordx4 {ar(AR+s_*16+u*8,4)}, v4, s[32:35], {so} offen{self.LD}")
                k(f"buffer_load_dwordx4 {ar(AR+s_*16+u*8+4,4)}, v4, s[32:35], {so} offen offset:1024{self.LD}")
        for tt in range(12):
            for x in rd(0, 0, tt): k(x)
        for hh in range(2):
            for ft in range(2):
                b = 48 + (hh * 2 + ft) * 4
                k(f"ds_read_b64_tr_b16 {ar(b,2)}, v13 offset:{hh*2048+ft*32}")
                k(f"ds_read_b64_tr_b16 {ar(b+2,2)}, v13 offset:{hh*2048+ft*32+1024}")
        def substep(slot, u, fill, last=False, first=False):
            nslot, nu = (slot, 1) if u == 0 else ((slot + 1) % 4, 0)
            fi = 0
            for tt in range(12):
                if last: k(f"s_waitcnt lgkmcnt({min(15, 22 - 2*tt)})")
                elif tt % 3 == 0: k("s_waitcnt lgkmcnt(15)")
                for i in range(2):
                    k(f"v_mfma_f32_16x16x32_bf16 {vr(acc(tt,i),4)}, {ar(WF+tt*4,4)}, {ar(AR+slot*16+u*8+i*4,4)}, {0 if first else vr(acc(tt,i),4)}")
                    if tt > 0 and not last: k(rd(nslot, nu, tt - 1)[i])
                    if (i == 1 or tt == 0) and fi < len(fill):
                        k(fill[fi]); fi += 1
            if not last:
                for x in rd(nslot, nu, 11): k(x)
            assert fi == len(fill), (fi, len(fill))
        k("s_waitcnt vmcnt(10) lgkmcnt(0)")
        self.stamp("A0 in")
        substep(0, 0, [], first=True)
        k("s_waitcnt vmcnt(4)")
        k("s_mov_b32 s57, 3")
        def stage(s_, loads, wait, cnt=False, x1=None, x2=None):
            k(f"s_waitcnt vmcnt({wait})")
            k("s_barrier")
            f1, f2 = [], []
            if loads:
                n = self.q_nxt(); ld = self.q_loads((s_ + 3) % 4)
                f1 = ["\n".join(n[0:3]), "\n".join(n[3:5])] + ld[:6] + ["\n".join(n[5:7]), "\n".join(n[7:])]
                f2 = ld[6:]
            f1 += x1 or []; f2 += x2 or []
            if cnt: f2.append("s_sub_u32 s57, s57, 1\ns_cmp_lg_u32 s57, 0")
            substep(s_, 1, f1)
            substep((s_ + 1) % 4, 0, f2)
        rest = ["s_mov_b32 m0, s22", "buffer_load_dwordx4 v10, s[24:27], s21 offen nt lds", f"s_add_u32 s21, s21, {32*12288}\ns_add_u32 s22, s22, 1024"]
        loop = k.label("qloop")
        k(".p2align 6")
        k(f"{loop}:")
        for s_ in range(4): stage(s_, True, 10, s_ == 3)
        k(f"s_cbranch_scc1 {loop}")
        def touch(P, off_expr, nrec, va):
            return [off_expr + f"\ns_add_u32 s12, s{P}, s20\ns_addc_u32 s13, s{P+1}, 0\ns_and_b32 s13, s13, 0xffff\ns_sub_u32 s14, {nrec}, s20\ns_mov_b32 s15, 0x20000",
                    f"buffer_load_dword a255, v{va}, s[12:15], 0 offen"]
        PFR = o.get("pf13rows", 256)
        tch = touch(P_WO, "s_and_b32 s20, s6, 2\ns_lshl_b32 s20, s20, 9" if o.get("pmap", 1) else "s_and_b32 s20, s6, 1\ns_lshl_b32 s20, s20, 10", 2 * MB, 56) + touch(P_W1, "s_mul_i32 s20, s6, 896", PFR * 7168, 57) + touch(P_W3, "s_mul_i32 s20, s6, 896", PFR * 7168, 57)
        self.stamp("qkv st12")
        stage(0, True, 10, x2=tch)
        stage(1, False, 13)
        stage(2, False, 3)
        substep(3, 1, [], True)
        self.stamp("qkv loop end")
        k("s_barrier")
        self.proj_ids()
        self.wo_pf = self.proj_setup(32, O_OFF, P_WO, o.get("wWS", 4))
        k(f"s_lshl_b32 s20, s40, 17\ns_lshl_b32 s21, s41, 8\ns_add_u32 s20, s20, s21\ns_sub_u32 s21, {4*MB}, s20")
        srd_off(k, 12, P_X, "s20", "s21")
        k("s_lshl_b32 s20, s3, 4\nv_add_u32 v17, s20, v16\nv_lshlrev_b32 v17, 11, v17\nv_lshrrev_b32 v3, 4, v1\nv_lshl_add_u32 v17, v3, 4, v17")
        self.wo_pf += [f"buffer_load_dwordx4 {ar(224+4*u,4)}, v17, s[12:15], 0 offen offset:{64*u}" for u in range(4)]
        QF = 32
        def gidx(seg, hh, i): return (seg * 2 + hh) * 2 + i
        def cvtq(seg):
            for hh in range(2):
                for i in range(2):
                    b = QF + gidx(seg, hh, i) * 4
                    for half in range(2):
                        a = acc(seg * 4 + hh * 2 + half, i)
                        k(f"v_cvt_pk_bf16_f32 v{b+2*half}, v{a}, v{a+1}")
                        k(f"v_cvt_pk_bf16_f32 v{b+2*half+1}, v{a+2}, v{a+3}")
        cvtq(1); cvtq(0)
        PT = 64
        for seg in (1, 0):
            for hh in range(2):
                for i in range(2):
                    j = hh * 2 + i
                    for ft in range(2):
                        k(f"v_mfma_f32_16x16x32_bf16 {vr(PT+(1-seg)*32+j*8+ft*4,4)}, {ar(48+(hh*2+ft)*4,4)}, {vr(QF+gidx(seg,hh,i)*4,4)}, 0")
        for hh in range(2):
            for i in range(2):
                for half in range(2):
                    a = acc(8 + hh * 2 + half, i)
                    t = 128 + ((hh * 2 + i) * 2 + half) * 2
                    k(f"v_cvt_pk_bf16_f32 v{t}, v{a}, v{a+1}")
                    k(f"v_cvt_pk_bf16_f32 v{t+1}, v{a+2}, v{a+3}")
                    k(f"ds_write_b64 v19, {vr(t,2)} offset:{hh*10240 + i*16*VP + half*32}")
        def outk(j, pm, e):
            hh, i = j >> 1, j & 1
            o_ = 32 + j * 8 + pm * 4
            for d in range(4): k(f"v_cvt_pk_bf16_f32 v{o_+d}, v{e+2*d}, v{e+2*d+1}")
            k(f"ds_write_b128 v18, {vr(o_,4)} offset:{hh*18432 + i*16*PKP + pm*64}")
        self.fill_every = 7
        self.featmap(4, PT, 160, 192, 224, 240, outk, self.wo_pf)
        k("s_waitcnt lgkmcnt(0)\ns_barrier")
        for ks in range(4):
            b = 64 + ks * 16
            for ft in range(2):
                for hf in range(2):
                    k(f"ds_read_b64_tr_b16 {ar(b+ft*4+hf*2,2)}, v20 offset:{(32*ks+4*hf)*PKP + ft*8}")
            for dt in range(2):
                for hf in range(2):
                    k(f"ds_read_b64_tr_b16 {ar(b+8+dt*4+hf*2,2)}, v21 offset:{(32*ks+4*hf)*VP + dt*32}")
        KV = 128
        for ks in range(4):
            b = 64 + ks * 16
            k(f"s_waitcnt lgkmcnt({min(15, 8*(3-ks))})")
            for dt in range(3):
                for ft in range(2):
                    dst = vr(KV + (dt * 2 + ft) * 4, 4)
                    bop = ar(b + 8 + dt * 4, 4) if dt < 2 else "v[24:27]"
                    k(f"v_mfma_f32_16x16x32_bf16 {dst}, {ar(b+ft*4,4)}, {bop}, {dst if ks else 0}")
        k("s_nop 7")
        for dt in range(3):
            for d in range(4): k(f"v_cvt_pk_bf16_f32 v{64+dt*4+d}, v{KV+dt*8+2*d}, v{KV+dt*8+2*d+1}")
            if dt < 2: k(f"buffer_store_dwordx4 {vr(64+dt*4,4)}, v22, s[16:19], 0 offen offset:{dt*1024} sc1")
            else: k(f"buffer_store_dwordx4 {vr(64+dt*4,4)}, v23, s[16:19], 0 offen sc1")
        self.stamp("kv stored")

    def proj_ids(self):
        k = self.k
        k("s_and_b32 s58, s7, 7\ns_lshr_b32 s59, s7, 3")
        if self.opt.get("pmap", 1):
            k("s_lshr_b32 s61, s6, 2\ns_lshl_b32 s61, s61, 4\ns_lshl_b32 s40, s58, 1\ns_add_u32 s40, s40, s61\ns_and_b32 s61, s6, 1\ns_add_u32 s40, s40, s61")
            k("s_and_b32 s61, s6, 2\ns_lshl_b32 s61, s61, 1\ns_add_u32 s41, s61, s59")
        else:
            k("s_lshr_b32 s61, s6, 1\ns_lshl_b32 s61, s61, 3\ns_add_u32 s40, s61, s58")
            k("s_and_b32 s61, s6, 1\ns_lshl_b32 s61, s61, 2\ns_add_u32 s41, s61, s59")
    def proj_setup(self, KB, A_OFF, PW, WS):
        k = self.k
        self.pWS = WS
        self.pHH = KB == 112
        WM = 7 if self.pHH else 1
        k("s_and_b32 s58, s7, 7\ns_lshr_b32 s59, s7, 3")
        k(f"s_lshl_b32 s60, s59, 1\ns_add_u32 s60, s60, s58\ns_and_b32 s60, s60, {WS-1}")
        k(f"s_mul_i32 s61, s3, {WM*131072}\nv_add_u32 v3, s61, v2")
        for i in range(4): k(f"s_xor_b32 s61, s3, {i}\ns_lshl_b32 s61, s61, 10\nv_add_u32 v{4+i}, s61, v3")
        k("v_lshrrev_b32 v12, 4, v1\nv_and_b32 v13, 15, v1\nv_lshlrev_b32 v14, 2, v12\nv_xor_b32 v13, v13, v14")
        k("v_lshlrev_b32 v13, 4, v13\nv_lshl_add_u32 v13, v12, 11, v13")
        k(f"s_mul_i32 s61, s3, {WM*65536}\nv_add_u32 v8, s61, v13")
        for j in range(1, 4): k(f"v_add_u32 v{8+j}, {j*7168}, v8")
        k("s_lshl_b32 s52, s3, 13")
        k("v_bfe_u32 v13, v1, 2, 2\nv_and_b32 v14, 3, v1")
        k("v_lshlrev_b32 v3, 10, v12\nv_lshl_add_u32 v3, v13, 8, v3\nv_lshl_add_u32 v3, v14, 4, v3\nv_add_u32 v3, s52, v3")
        for u in (3, 2, 0): k(f"v_xor_b32 v{12+u}, {u}, v13\nv_lshl_add_u32 v{12+u}, v{12+u}, 6, v3")
        k("v_xor_b32 v13, 1, v13\nv_lshl_add_u32 v13, v13, 6, v3")
        k(f"s_lshl_b32 s61, s40, 12\ns_sub_u32 s53, {KB*131072}, s61\ns_add_u32 s61, s61, {A_OFF}")
        srd_off(k, 32, 4, "s61", "s53")
        k(f"s_lshl_b32 s61, s41, 8\ns_sub_u32 s53, {KB*32*2048}, s61")
        srd_off(k, 36, PW, "s61", "s53")
        k("s_mov_b32 s58, 0\ns_mov_b32 s59, s60")
        pf = []
        for s_ in range(3):
            pf.append("\n".join(self.p_nxt(True) + [f"s_mov_b32 s{28+s_}, s53"]))
            for x in self.p_loads(s_):
                if x.startswith("s_"): pf.append(x + "\ns_nop 0")
                elif " lds" in x: pf.append(x)
        return pf
    def p_nxt(self, special=False):
        WS = self.pWS
        if self.pHH:
            assert WS == 4
            if special: head = "s_add_u32 s61, s58, s59\ns_mul_i32 s61, s61, 28\ns_add_u32 s61, s61, 3"
            else: head = ("s_add_u32 s61, s58, s59\ns_sub_u32 s61, s61, 4\ns_mul_i32 s53, s61, 43\ns_lshr_b32 s53, s53, 8\ns_mul_i32 s54, s53, 6\ns_sub_u32 s54, s61, s54\n"
                          "s_mul_i32 s53, s53, 22\ns_cmp_ge_u32 s54, 3\ns_addc_u32 s61, s61, s53")
            return [head, "s_lshl_b32 s53, s61, 17", "s_lshl_b32 s54, s61, 16", "s_add_u32 s55, s54, 0x8000",
                    "s_add_u32 s59, s59, 1", f"s_and_b32 s59, s59, {WS-1}", "s_cmp_eq_u32 s59, s60", f"s_cselect_b32 s61, {WS}, 0", "s_add_u32 s58, s58, s61"]
        return ["s_add_u32 s61, s58, s59", "s_lshl_b32 s53, s61, 19", "s_lshl_b32 s54, s61, 18", "s_add_u32 s55, s54, 0x8000",
                "s_add_u32 s59, s59, 1", f"s_and_b32 s59, s59, {WS-1}", "s_cmp_eq_u32 s59, s60", f"s_cselect_b32 s61, {WS}, 0", "s_add_u32 s58, s58, s61"]
    def p_lda(self, slot, i, so, special=False):
        r = 32 + slot * 16 + i * 4
        if special:
            return f"buffer_load_dwordx2 {ar(r,2)}, v{116+i}, s[32:35], {so} offen{self.LD}\nbuffer_load_dwordx2 {ar(r+2,2)}, v{116+i}, s[32:35], {so} offen offset:512{self.LD}"
        return f"buffer_load_dwordx4 {ar(r,4)}, v{4+i}, s[32:35], {so} offen{self.LD}"
    def p_loads(self, slot, special=False):
        L = []
        for hb in range(2):
            L.append(f"s_add_u32 m0, s52, {slot*32768 + hb*4096}")
            L.append(self.p_lda(slot, 2 * hb, "s53", special))
            for j in range(4):
                L.append(f"buffer_load_dwordx4 v{8+j}, s[36:39], s{54+hb} offen offset:{1024*j} lds")
                if j == 1: L.append(self.p_lda(slot, 2 * hb + 1, "s53", special))
        return L
    def wo_extra(self):
        d3 = ["\n".join(self.p_nxt())]
        for x in self.p_loads(3):
            if x.startswith("s_"): d3.append(x + "\ns_nop 0")
            elif " lds" in x: d3.append(x)
        raw = []
        for st in range(4):
            L = ["\n".join(self.p_nxt())]
            for b in range(8):
                L.append(f"buffer_load_dwordx4 {ar(96+st*32+b*4,4)}, v{8+(b&3)}, s[36:39], s{54+(b>>2)} offen offset:{1024*(b&3)}")
            raw.append(L)
        return d3, raw
    def wo_main(self, pre=(), late=(), npre_ld=0, fill6=()):
        k = self.k; acc = self.pacc
        k("s_mov_b32 s58, 0\ns_mov_b32 s59, s60")
        def lda(slot): return ["\n".join(self.p_nxt())] + [f"buffer_load_dwordx4 {ar(32+slot*16+i*4,4)}, v{4+i}, s[32:35], s53 offen{self.LD}" for i in range(4)]
        for s_ in range(4):
            for x in lda(s_): k(x)
        k("v_add_u32 v16, s52, v2\nv_add_u32 v17, 0x10000, v16")
        for x in pre: k(x)
        nl = len(late)
        for s_ in range(8):
            slot = s_ % 4; last = s_ == 7
            hi = min(7, max(3, s_ + 2))
            k(f"s_waitcnt vmcnt({4*(hi-s_) + (nl if s_ >= 5 else 0) + (npre_ld if s_ <= 3 else 0)})")
            fill = list(fill6) if s_ == 6 else []
            if 1 <= s_ <= 4:
                ws_ = (s_ - 1) % 4
                fill += lda(ws_)
                fill += [f"ds_write_b128 v{16+(ws_>>1)}, {ar(96+(s_-1)*32+b*4,4)} offset:{(ws_&1)*32768 + b*1024}" for b in range(8)]
                if s_ == 4: fill += list(late)
            fi = 0
            for t in range(8):
                if last: k(f"s_waitcnt lgkmcnt({14 - 2*t})")
                elif t % 2 == 0: k("s_waitcnt lgkmcnt(10)")
                for i in range(4):
                    k(f"v_mfma_f32_16x16x32_bf16 {vr(acc(t,i),4)}, {ar(t*4,4)}, {ar(32+slot*16+i*4,4)}, {vr(acc(t,i),4) if s_ else 0}")
                    if i < 2 and t > 0:
                        if not last: k(self.p_rd((slot + 1) % 4, t - 1)[i])
                    elif fi < len(fill):
                        k(fill[fi]); fi += 1
            assert fi == len(fill), (fi, len(fill))
            if not last:
                for x in self.p_rd((slot + 1) % 4, 7): k(x)
    @staticmethod
    def pacc(t, i): return 128 + (t * 4 + i) * 4
    def p_rd(self, slot, t):
        off = (slot & 1) * 32768 + (t & 1) * 8
        va = (12 if slot < 2 else 24) + (t >> 1)
        return [f"ds_read_b64_tr_b16 {ar(t*4,2)}, v{va} offset:{off}", f"ds_read_b64_tr_b16 {ar(t*4+2,2)}, v{va} offset:{off+4096}"]
    def proj_pre(self, zero=True):
        k = self.k
        for t in range(8):
            for x in self.p_rd(0, t): k(x)
        for u in range(4): k(f"v_add_u32 v{24+u}, 0x10000, v{12+u}")
        if zero:
            for r in range(128): k(f"v_mov_b32 v{128+r}, 0")
    def proj_main(self, NS, pre=(), late=()):
        k = self.k; acc = self.pacc
        sp = self.pHH
        for s_ in range(3):
            for i in range(4): k(self.p_lda(s_, i, f"s{28+s_}", sp))
        for x in pre: k(x)
        def step(slot, wait, loads, cnt=False, last=False, special=False, first=False):
            if wait is not None: k(f"s_waitcnt vmcnt({wait})")
            fill = []
            if loads:
                n = self.p_nxt(special)
                fill = ["\n".join(n[0:2]), "\n".join(n[2:4])] + self.p_loads((slot + 3) % 4, special) + ["\n".join(n[4:6]), "\n".join(n[6:])]
            if cnt: fill[-1] += "\ns_sub_u32 s57, s57, 1\ns_cmp_lg_u32 s57, 0"
            fi = 0
            for t in range(8):
                if last: k(f"s_waitcnt lgkmcnt({14 - 2*t})")
                elif t % 2 == 0: k("s_waitcnt lgkmcnt(10)")
                for i in range(4):
                    k(f"v_mfma_f32_16x16x32_bf16 {vr(acc(t,i),4)}, {ar(t*4,4)}, {ar(32+slot*16+i*4,4)}, {0 if first else vr(acc(t,i),4)}")
                    if i < 2 and t > 0:
                        if not last: k(self.p_rd((slot + 1) % 4, t - 1)[i])
                    elif fi < len(fill):
                        k(fill[fi]); fi += 1
            assert fi == len(fill), (fi, len(fill))
            if not last:
                for x in self.p_rd((slot + 1) % 4, 7): k(x)
        step(0, 16 if sp else 8, True, special=sp, first=True)
        nit = (NS - 4) // 4
        if nit > 1:
            k(f"s_mov_b32 s57, {nit}")
            loop = k.label("ploop")
            k(".p2align 6")
            k(f"{loop}:")
        for u in range(4): step((1 + u) % 4, 12, True, cnt=(u == 3 and nit > 1))
        if nit > 1: k(f"s_cbranch_scc1 {loop}")
        for x in late: k(x)
        nl = len(late)
        step(1, 12 + nl, False); step(2, nl, False); step(3, None, False, last=True)
    def proj_reduce(self, extra_reads=None):
        k = self.k; acc = self.pacc
        k("v_add_u32 v16, s52, v2\nv_add_u32 v24, 0x10000, v16")
        for i in range(1, 4): k(f"s_xor_b32 s61, s3, {i}\ns_lshl_b32 s61, s61, 13\ns_add_u32 s61, s61, {(i-1)*32768}\nv_add_u32 v{16+i}, s61, v2")
        for i in range(1, 4):
            for t in range(8): k(f"ds_write_b128 v{16 if i < 3 else 24}, {vr(acc(t,i),4)} offset:{((i-1)&1)*32768 + t*1024}")
        k("s_waitcnt lgkmcnt(0)\ns_barrier")
        if extra_reads: extra_reads()
        for i in range(1, 4):
            for t in range(8): k(f"ds_read_b128 {vr(acc(t,i),4)}, v{16+i} offset:{t*1024}")
        for i in range(1, 4):
            for t in range(8):
                left = 23 - ((i - 1) * 8 + t)
                if left <= 15 or (i == 1 and t == 0): k(f"s_waitcnt lgkmcnt({min(left,15)})")
                for h in range(2): k(f"v_pk_add_f32 {vr(acc(t,0)+2*h,2)}, {vr(acc(t,0)+2*h,2)}, {vr(acc(t,i)+2*h,2)}")
        k("s_barrier")
    def modvec(self, vec, dst):
        for u in range(4):
            for h in range(2): self.k(f"ds_read_b128 {vr(dst+8*u+4*h,4)}, v20 offset:{vec*512 + u*128 + h*16}")

    def attn(self):
        k = self.k
        KVX = 128 * 1024
        PH = 32
        def outq(j, pm, e):
            for d in range(4): k(f"v_cvt_pk_bf16_f32 v{PH+j*8+pm*4+d}, v{e+2*d}, v{e+2*d+1}")
        self.fill_every = 5
        def mid():
            k(f"s_add_u32 s20, s63, {C_S2}")
            self.arrive("s20")
            self.stamp("S2 arrive")
        d3, raw = self.wo_extra()
        NQ = self.opt.get("rawq", 2)
        self.fill_every = 6
        self.featmap(4, 96, 160, 192, 224, 240, outq, d3 + sum(raw[:NQ], []), mid, self.opt.get("mid_at", 150))
        k(f"s_lshl_b32 s14, s63, 1\ns_mul_i32 s14, s14, {KVS}\ns_add_u32 s14, s14, {KVP_OFF}")
        srd_off(k, 16, 4, "s14", 15 * 32 * KVS + 2 * KVS)
        k(f"s_lshr_b32 s12, s3, 1\ns_mul_i32 s12, s12, {KVS}\ns_and_b32 s13, s3, 1\ns_lshl_b32 s13, s13, 11\ns_add_u32 s12, s12, s13")
        k("v_add_u32 v16, s12, v2")
        k(f"v_and_b32 v17, 15, v1\nv_mul_u32_u24 v17, {32*KVS}, v17\nv_lshrrev_b32 v18, 4, v1\nv_lshl_add_u32 v17, v18, 4, v17\nv_add_u32 v17, 4096, v17")
        k(f"s_mov_b32 s15, {KVS}")
        srd_off(k, 24, 4, O_OFF, 4 * MB)
        k(f"s_add_u32 s12, s63, {C_S2}")
        self.stamp("q featmap done")
        self.wait("s12", 16)
        self.stamp("S2 done")
        PR = 128
        def ldp(p):
            k(f"s_add_u32 s12, s62, {p}\ns_and_b32 s12, s12, 15\ns_mul_i32 s12, s12, {32*KVS}")
            k(f"buffer_load_dwordx4 {vr(PR+8*p,4)}, v16, s[16:19], s12 offen{self.LD}")
            k(f"buffer_load_dwordx4 {vr(PR+8*p+4,4)}, v16, s[16:19], s12 offen offset:1024{self.LD}")
        ZF = 64; MR = 112
        def ldx(q):
            if q < 2:
                for pm in range(2): k(f"buffer_load_dwordx4 {vr(ZF+(q*2+pm)*4,4)}, v17, s[16:19], {'s15' if q else '0'} offen offset:{pm*64}{self.LD}")
        AH = self.opt.get("kvahead", 6)
        for p in range(AH): ldp(p)
        SA = 80; T = 96
        for p in range(16):
            issued = min(18, AH + p)
            k(f"s_waitcnt vmcnt({2*(issued-1-p)})")
            nx = AH + p
            if nx < 16: ldp(nx)
            elif nx < 18: ldx(nx - 16)
            for d in range(8):
                if p == 0: unpack(k, SA + 2 * d, SA + 2 * d + 1, PR + d)
                else: unpack(k, T + 2 * d, T + 2 * d + 1, PR + 8 * p + d)
            if p:
                for d in range(8): k(f"v_pk_add_f32 {vr(SA+2*d,2)}, {vr(SA+2*d,2)}, {vr(T+2*d,2)}")
        self.stamp("kv summed")
        rawl = sum(raw[NQ:], [])
        nraw = 8 * (4 - NQ)
        for d in range(8): k(f"v_cvt_pk_bf16_f32 v{T+d}, v{SA+2*d}, v{SA+2*d+1}")
        k(f"s_lshl_b32 s12, s3, 11\ns_add_u32 s12, s12, {KVX}\nv_add_u32 v16, s12, v2")
        k(f"ds_write_b128 v16, {vr(T,4)}\nds_write_b128 v16, {vr(T+4,4)} offset:1024")
        k("s_waitcnt vmcnt(0)")
        for x in rawl: k(x)
        k(f"v_add_u32 v16, {KVX}, v2")
        k("s_waitcnt lgkmcnt(0)\ns_barrier")
        KF = 128
        for f in range(8): k(f"ds_read_b128 {vr(KF+4*f,4)}, v16 offset:{f*1024}")
        OA = 160
        for pm in range(2):
            for j in range(4):
                hh = j >> 1
                d_ = vr(OA + j * 12 + 8, 4)
                k(f"v_mfma_f32_16x16x32_bf16 {d_}, {vr(ZF+(hh*2+pm)*4,4)}, {vr(PH+j*8+pm*4,4)}, {d_ if pm else 0}")
        k("s_waitcnt lgkmcnt(0)")
        for pm in range(2):
            for j in range(4):
                hh = j >> 1
                for dt in range(2):
                    d_ = vr(OA + j * 12 + dt * 4, 4)
                    k(f"v_mfma_f32_16x16x32_bf16 {d_}, {vr(KF+((hh*2+pm)*2+dt)*4,4)}, {vr(PH+j*8+pm*4,4)}, {d_ if pm else 0}")
        DN = lambda j: OA + j * 12 + 8
        for j in range(4): k(f"v_pk_add_f32 {vr(DN(j),2)}, {vr(DN(j),2)}, {vr(DN(j)+2,2)}")
        for j in range(4): k(f"v_add_f32 v{DN(j)}, v{DN(j)}, v{DN(j)+1}")
        for sw in ("v_permlane16_swap_b32", "v_permlane32_swap_b32"):
            for j in range(4): k(f"v_mov_b32 v{DN(j)+1}, v{DN(j)}")
            k("s_nop 1")
            for j in range(4): k(f"{sw} v{DN(j)}, v{DN(j)+1}")
            for j in range(4): k(f"v_add_f32 v{DN(j)}, v{DN(j)}, v{DN(j)+1}")
        for j in range(4): k(f"v_add_f32 v{DN(j)}, 0x358637bd, v{DN(j)}")
        for j in range(4): k(f"v_rcp_f32 v{DN(j)}, v{DN(j)}")
        k("s_lshl_b32 s12, s63, 18\ns_lshl_b32 s13, s62, 13\ns_add_u32 s12, s12, s13\ns_lshl_b32 s13, s3, 11\ns_add_u32 s12, s12, s13\ns_add_u32 s13, s12, 0x20000")
        for j in range(4):
            o_ = OA + j * 12
            for d in range(4): k(f"v_pk_mul_f32 {vr(o_+2*d,2)}, {vr(o_+2*d,2)}, {vr(DN(j),2)} op_sel_hi:[1,0]")
            for d in range(4): k(f"v_cvt_pk_bf16_f32 v{64+4*j+d}, v{o_+2*d}, v{o_+2*d+1}")
            k(f"buffer_store_dwordx4 {vr(64+4*j,4)}, v2, s[24:27], s{12+(j>>1)} offen offset:{(j&1)*1024} sc1")
        self.stamp("o stored")
        self.proj_pre(zero=False)
        k(f"s_add_u32 s20, s62, {C_S3}")
        self.arrive("s20")
        self.stamp("S3 arrive")

    def wo_ln2(self):
        k = self.k; acc = self.pacc
        k("v_and_b32 v21, 15, v1\ns_lshl_b32 s12, s3, 4\nv_add_u32 v21, s12, v21\nv_lshrrev_b32 v22, 4, v1")
        k("v_lshlrev_b32 v23, 11, v21\nv_lshl_add_u32 v23, v22, 4, v23")
        XR = 96
        k(f"v_lshlrev_b32 v20, 5, v22\nv_add_u32 v20, {PERS}, v20")
        GA = 32; MR = 64
        srd_off(k, 16, 4, MODR_OFF, 2 * 16384)
        k("v_lshrrev_b32 v80, 5, v1\nv_and_b32 v81, 31, v1\nv_lshlrev_b32 v81, 4, v81\nv_lshl_add_u32 v81, v80, 12, v81")
        k("s_lshl_b32 s12, s41, 9\ns_and_b32 s13, s3, 1\ns_lshl_b32 s14, s13, 13\ns_add_u32 s12, s12, s14\nv_add_u32 v81, s12, v81")
        k("v_sub_u32 v80, s13, v80\nv_cmp_eq_u32 vcc, 1, v80\ns_nop 1\nv_cndmask_b32 v80, 0, 1.0, vcc")
        k(f"s_lshl_b32 s13, s13, 10\ns_add_u32 s13, s13, {PERS}\nv_add_u32 v82, s13, v2")
        k(f"s_lshr_b32 s20, s40, 1\ns_add_u32 s20, s20, {C_S3}")
        self.wait("s20", 16)
        self.stamp("S3 done")
        k("s_waitcnt lgkmcnt(0)")
        late = []
        pre = [f"v_accvgpr_read_b32 v{XR+d}, a{224+d}" for d in range(16)]
        NT_ = self.opt.get("wtouch", 1)
        if NT_:
            pre += ["s_lshl_b32 s20, s7, 2\ns_add_u32 s20, s20, s3\ns_and_b32 s21, s20, 1\ns_cmp_eq_u32 s21, 0",
                    f"s_cselect_b32 s24, s{P_W1}, s{P_W3}\ns_cselect_b32 s25, s{P_W1+1}, s{P_W3+1}\ns_and_b32 s25, s25, 0xffff\ns_mov_b32 s26, {1024*7168}\ns_mov_b32 s27, 0x20000",
                    f"s_lshr_b32 s21, s20, 1\ns_lshl_b32 s21, s21, 3\ns_add_u32 s21, s21, 256\ns_mul_i32 s21, s21, 7168\ns_mul_i32 s22, s6, 896\ns_add_u32 s21, s21, s22\ns_add_u32 s22, s21, {512*7168}",
                    "v_lshrrev_b32 v112, 3, v1\nv_mul_u32_u24 v112, 7168, v112\nv_and_b32 v113, 7, v1\nv_min_u32 v113, 6, v113\nv_lshl_add_u32 v112, v113, 7, v112"]
            late = ["buffer_load_dword v114, v112, s[24:27], s21 offen", "buffer_load_dword v114, v112, s[24:27], s22 offen"][:NT_]
        pre = [f"s_mov_b32 s12, {p*16384}\nbuffer_load_dwordx4 {vr(MR+4*p,4)}, v81, s[16:19], s12 offen{self.LD}" for p in range(2)] + pre
        f6 = []
        class _L:
            def __call__(self_, x): f6.append(x)
        kk = _L()
        for j in range(0, 4, 2): kk(f"v_add_f32 v{MR+j}, v{MR+j}, v{MR+4+j}\nv_add_f32 v{MR+j+1}, v{MR+j+1}, v{MR+5+j}")
        t_ = []
        bf16r_pair(t_.append, MR, MR + 1); bf16r_pair(t_.append, MR + 2, MR + 3)
        t_ += [f"v_add_f32 v{MR+j}, v80, v{MR+j}" for j in range(4)]
        bf16r_pair(t_.append, MR, MR + 1); bf16r_pair(t_.append, MR + 2, MR + 3)
        for j in range(0, len(t_), 2): kk("\n".join(t_[j:j + 2]))
        kk(f"ds_write_b128 v82, {vr(MR,4)}")
        self.wo_main(pre=pre, late=late, npre_ld=2, fill6=f6)
        self.stamp("wo loop end")
        self.proj_reduce(extra_reads=lambda: self.modvec(0, GA))
        self.stamp("wo reduced")
        FP = self.opt.get("fdma", 2)
        if FP == 1:
            self.ffn1_setup(); self.ffn1_prefetch()
        X = 64
        for u in range(4):
            for h in range(2):
                for q in range(2):
                    x_ = X + 8 * u + 4 * h + 2 * q
                    unpack(k, x_, x_ + 1, XR + 4 * u + 2 * h + q)
                    k(f"v_pk_fma_f32 {vr(x_,2)}, {vr(GA+8*u+4*h+2*q,2)}, {vr(acc(2*u+h,0)+2*q,2)}, {vr(x_,2)}")
        SB, CB = 128, 160
        self.modvec(1, SB); self.modvec(2, CB)
        for d in range(16):
            k(f"v_cvt_pk_bf16_f32 v{XR+d}, v{X+2*d}, v{X+2*d+1}")
        for d in range(16):
            k(f"v_accvgpr_write_b32 a{240+d}, v{XR+d}")
            unpack(k, X + 2 * d, X + 2 * d + 1, XR + d)
        if self.opt.get("dbg"):
            k(f"s_lshl_b32 s12, s40, 17\ns_lshl_b32 s13, s41, 8\ns_add_u32 s12, s12, s13\ns_sub_u32 s13, {4*MB}, s12\ns_add_u32 s12, s12, {X1_OFF}")
            srd_off(k, 16, 4, "s12", "s13")
            for u in range(4): k(f"buffer_store_dwordx4 {vr(XR+4*u,4)}, v23, s[16:19], 0 offen offset:{64*u}")
        D = 32
        def xred(r, t):
            k(f"v_mov_b32 v{t}, v{r}\ns_nop 1\nv_permlane16_swap_b32 v{r}, v{t}\nv_add_f32 v{r}, v{r}, v{t}")
            k(f"v_mov_b32 v{t}, v{r}\ns_nop 1\nv_permlane32_swap_b32 v{r}, v{t}\nv_add_f32 v{r}, v{r}, v{t}")
        for d in range(8): k(f"v_pk_add_f32 {vr(D+2*d,2)}, {vr(X+4*d,2)}, {vr(X+4*d+2,2)}")
        for st in (4, 2, 1):
            for d in range(st): k(f"v_pk_add_f32 {vr(D+2*d,2)}, {vr(D+2*d,2)}, {vr(D+2*(d+st),2)}")
        k(f"v_add_f32 v16, v{D}, v{D+1}")
        xred(16, 18)
        k("v_mul_f32 v16, 0x3c000000, v16")
        for d in range(16): k(f"v_pk_add_f32 {vr(D+2*d,2)}, {vr(X+2*d,2)}, v[16:17] op_sel_hi:[1,0] neg_lo:[0,1] neg_hi:[0,1]")
        k(f"v_pk_mul_f32 v[18:19], {vr(D,2)}, {vr(D,2)}\nv_pk_mul_f32 v[24:25], {vr(D+2,2)}, {vr(D+2,2)}")
        for d in range(2, 16):
            a_ = 18 if d % 2 == 0 else 24
            k(f"v_pk_fma_f32 {vr(a_,2)}, {vr(D+2*d,2)}, {vr(D+2*d,2)}, {vr(a_,2)}")
        k("v_pk_add_f32 v[18:19], v[18:19], v[24:25]\nv_add_f32 v17, v18, v19")
        xred(17, 18)
        k(f"s_lshl_b32 s12, s40, 12\ns_add_u32 s12, s12, {STAT_OFF}")
        srd_off(k, 16, 4, "s12", 4096)
        k("v_and_b32 v18, 15, v1\nv_lshlrev_b32 v18, 3, v18\ns_lshl_b32 s12, s3, 10\nv_add_u32 v18, s12, v18\nv_lshl_add_u32 v19, v22, 8, v18\ns_lshl_b32 s12, s41, 7")
        k("s_mov_b64 exec, 0xffff")
        k("buffer_store_dwordx2 v[16:17], v18, s[16:19], s12 offen sc1")
        k("s_mov_b64 exec, -1")
        self.stamp("stat pub")
        if self.opt.get("splitk", 1):
            srd_off(k, 24, 4, XCH_OFF, 256 * 16384)
            k("s_lshl_b32 s14, s40, 3\ns_add_u32 s14, s14, s41\ns_lshl_b32 s14, s14, 14\ns_lshl_b32 s15, s3, 12\ns_add_u32 s14, s14, s15")
            for r in range(4): k(f"v_mov_b32 v{112+r+4}, -1")
            for j in range(4): k(f"buffer_store_dwordx4 v[116:119], v2, s[24:27], s14 offen offset:{1024*j} sc1")
        if FP == 3:
            self.ffn1_setup(); self.ffn1_prefetch()
        lp = k.label("spoll"); dn = k.label("sdone")
        k(f"s_mov_b32 s97, 0\ns_mov_b32 s13, {SENT}")
        k(f"{lp}:")
        k("buffer_load_dwordx2 v[24:25], v19, s[16:19], 0 offen sc1")
        k("buffer_load_dwordx2 v[26:27], v19, s[16:19], 0 offen offset:128 sc1")
        k("s_waitcnt vmcnt(0)")
        k("v_cmp_eq_u32 vcc, s13, v25\nv_cmp_eq_u32 s[98:99], s13, v27\ns_nop 1\ns_or_b64 vcc, vcc, s[98:99]")
        k(f"s_cbranch_scc0 {dn}")
        k(f"s_add_u32 s97, s97, 1\ns_cmp_lt_u32 s97, 100000\ns_cbranch_scc1 {lp}")
        k(f"{dn}:")
        self.stamp("stat done")
        k("v_add_f32 v16, v24, v26")
        xred(16, 18)
        k("v_mul_f32 v16, 0x3e000000, v16")
        k("v_sub_f32 v24, v24, v16\nv_sub_f32 v26, v26, v16\nv_mul_f32 v24, v24, v24\nv_fmac_f32 v24, v26, v26")
        k("v_add_f32 v17, v25, v27\nv_fmac_f32 v17, 0x43000000, v24")
        xred(17, 18)
        k("v_mul_f32 v17, 0x3a800000, v17")
        bf16r_pair(k, 16, 17)
        k("v_add_f32 v17, 0x3727c5ac, v17"); bf16r(k, 17)
        k("v_sqrt_f32 v17, v17\ns_nop 0"); bf16r(k, 17)
        k("v_rcp_f32 v18, v17")
        srd_off(k, 16, 4, H2_OFF, 4 * MB)
        k("s_lshl_b32 s12, s41, 19\ns_lshl_b32 s13, s40, 12\ns_add_u32 s12, s12, s13\ns_lshl_b32 s13, s3, 10\ns_add_u32 s12, s12, s13")
        k("s_waitcnt lgkmcnt(0)")
        for u in range(4):
            R = range(4 * u, 4 * u + 4)
            for d in R: k(f"v_pk_add_f32 {vr(X+2*d,2)}, {vr(X+2*d,2)}, v[16:17] op_sel_hi:[1,0] neg_lo:[0,1] neg_hi:[0,1]")
            for d in R: bf16r_pair(k, X + 2 * d, X + 2 * d + 1)
            for d in R: k(f"v_pk_mul_f32 {vr(X+2*d,2)}, {vr(X+2*d,2)}, v[18:19] op_sel_hi:[1,0]")
            for d in R: bf16r_pair(k, X + 2 * d, X + 2 * d + 1)
            for d in R: k(f"v_pk_mul_f32 {vr(X+2*d,2)}, {vr(X+2*d,2)}, {vr(CB+2*d,2)}")
            for d in R: bf16r_pair(k, X + 2 * d, X + 2 * d + 1)
            for d in R: k(f"v_pk_add_f32 {vr(X+2*d,2)}, {vr(X+2*d,2)}, {vr(SB+2*d,2)}")
            for d in R: k(f"v_cvt_pk_bf16_f32 v{32+d}, v{X+2*d}, v{X+2*d+1}")
            k(f"buffer_store_dwordx4 {vr(32+4*u,4)}, v2, s[16:19], s12 offen sc1")
            if u < 3: k("s_add_u32 s12, s12, 0x20000")
        self.stamp("h2 stored")
        if FP in (0, 2): self.ffn1_setup()
        if FP == 0: self.ffn1_prefetch()
        k(f"s_add_u32 s20, s40, {C_S5}")
        self.arrive("s20", pre=f"s_waitcnt vmcnt({12 if FP == 0 else 0}) lgkmcnt(0)")
        self.stamp("S5 arrive")
        if FP == 2: self.ffn1_prefetch()

    def ffn1_setup(self):
        k = self.k
        WS = self.opt.get("fWS", 4); self.fWS = WS
        STG = 16896
        k("s_and_b32 s61, s7, 3\ns_lshl_b32 s43, s6, 2\ns_add_u32 s43, s43, s61\ns_lshr_b32 s42, s7, 2\ns_and_b32 s56, s43, 1")
        k(f"s_lshl_b32 s60, s61, 1\ns_add_u32 s60, s60, s42\ns_and_b32 s60, s60, {WS-1}")
        k("s_lshl_b32 s61, s3, 12\nv_add_u32 v3, s61, v2")
        k("v_lshrrev_b32 v6, 4, v1\nv_and_b32 v7, 15, v1\nv_lshlrev_b32 v8, 1, v6\nv_xor_b32 v7, v7, v8")
        k("s_lshl_b32 s61, s56, 1\nv_add_u32 v9, s61, v7\nv_subrev_u32 v10, 14, v9\nv_cmp_le_u32 vcc, 14, v9\ns_nop 1\nv_cndmask_b32 v9, v9, v10, vcc")
        k("s_lshl_b32 s61, s3, 3\nv_add_u32 v12, s61, v6\nv_mul_u32_u24 v12, 7168, v12\nv_lshl_add_u32 v4, v9, 4, v12")
        k("v_mov_b32 v10, 0x40000000\nv_cmp_le_u32 vcc, 14, v7\ns_nop 1\nv_cndmask_b32 v4, v4, v10, vcc")
        k(f"v_add_u32 v5, {4*7168 - 2048}, v4")
        k("v_bfe_u32 v7, v1, 2, 2\nv_and_b32 v12, 3, v1\nv_mul_u32_u24 v13, 4224, v6\nv_lshl_add_u32 v13, v7, 8, v13\nv_lshl_add_u32 v13, v12, 3, v13")
        for tl in range(4): k(f"v_xor_b32 v14, {tl}, v7\nv_lshl_add_u32 v{8+tl}, v14, 5, v13")
        k(f"s_lshl_b32 s61, s42, 14\ns_sub_u32 s53, {4*MB}, s61\ns_add_u32 s61, s61, {H2_OFF}")
        srd_off(k, 32, 4, "s61", "s53")
        k(f"s_mul_i32 s61, s43, 224\ns_sub_u32 s53, {1024*7168}, s61")
        srd_off(k, 36, P_W1, "s61", "s53")
        k(f"s_add_u32 s44, s{P_W3}, s61\ns_addc_u32 s45, s{P_W3+1}, 0\ns_sub_u32 s44, s44, 1024\ns_subb_u32 s45, s45, 0\ns_and_b32 s45, s45, 0xffff")
        k("s_add_u32 s46, s53, 1024\ns_mov_b32 s47, 0x20000")
        srd_off(k, 48, 4, HH_OFF, 2048 * 3584 * 2)
        k("s_mul_i32 s52, s3, 4224")
        k("s_mov_b32 s58, 0\ns_mov_b32 s59, s60")
    def ffn1_prefetch(self):
        k = self.k; STG = 16896
        for s_ in range(3):
            for x in self.f_nxt(): k(x)
            k(f"s_mov_b32 s{28+s_}, s53")
            k(f"s_add_u32 m0, s52, {s_*STG}\ns_nop 0")
            for x in self.f_dma(): k(x)
    def f_nxt(self):
        WS = self.fWS
        return ["s_add_u32 s61, s58, s59", "s_lshl_b32 s53, s61, 17", f"s_mul_i32 s54, s61, {32*7168}",
                "s_add_u32 s59, s59, 1", f"s_and_b32 s59, s59, {WS-1}", "s_cmp_eq_u32 s59, s60", f"s_cselect_b32 s61, {WS}, 0", "s_add_u32 s58, s58, s61"]
    def f_dma(self):
        return ["buffer_load_dwordx4 v4, s[36:39], s54 offen lds", "buffer_load_dwordx4 v4, s[44:47], s54 offen offset:1024 lds",
                "buffer_load_dwordx4 v5, s[36:39], s54 offen offset:2048 lds", "buffer_load_dwordx4 v5, s[44:47], s54 offen offset:3072 lds"]
    def ffn1(self):
        k = self.k
        STG = 16896; WF = 0; AR = 64; ACC = 32
        def acc(tt, i): return ACC + (tt * 4 + i) * 4
        def lda(slot, so="s53"): return [f"buffer_load_dwordx4 {ar(AR+slot*16+i*4,4)}, v3, s[32:35], {so} offen offset:{i*1024}{self.LD}" for i in range(4)]
        def rd(slot, tt):
            t, mat = tt >> 1, tt & 1
            o_ = slot * STG + mat * 1024 + (t >> 2) * 128
            return [f"ds_read_b64_tr_b16 {ar(WF+tt*4,2)}, v{8+(t&3)} offset:{o_}", f"ds_read_b64_tr_b16 {ar(WF+tt*4+2,2)}, v{8+(t&3)} offset:{o_+2048}"]
        k("s_lshl_b32 s20, s7, 2\ns_add_u32 s20, s20, s3\ns_lshl_b32 s20, s20, 3\nv_lshrrev_b32 v12, 3, v1\nv_add_u32 v12, s20, v12")
        k("v_and_b32 v13, 7, v1\nv_lshlrev_b32 v12, 11, v12\nv_lshl_add_u32 v12, v13, 7, v12")
        if self.opt.get("pmap", 1):
            k(f"s_and_b32 s20, s6, 2\ns_lshl_b32 s20, s20, 9\ns_sub_u32 s21, {1792*2048}, s20\ns_and_b32 s22, s6, 1\ns_mul_i32 s22, s22, {1792*2048}\ns_add_u32 s20, s20, s22")
            k(f"s_mov_b32 s23, {1024*2048}")
            if self.opt.get("w2t", 1) == 1:
                k(f"s_lshr_b32 s22, s6, 2\ns_mul_i32 s22, s22, {896*2048}\ns_add_u32 s20, s20, s22\ns_sub_u32 s21, s21, {896*2048}")
        else:
            k(f"s_and_b32 s20, s6, 1\ns_lshl_b32 s20, s20, 10\ns_sub_u32 s21, {896*2048}, s20\ns_lshr_b32 s22, s6, 1\ns_mul_i32 s22, s22, {896*2048}\ns_add_u32 s20, s20, s22")
        srd_off(k, 16, P_W2, "s20", "s21")
        k(f"s_lshl_b32 s20, s42, 2\ns_add_u32 s20, s20, {C_S5}")
        k("s_waitcnt vmcnt(0)")
        self.wait("s20", 8, 4)
        self.stamp("S5 done")
        for s_ in range(3):
            for x in lda(s_, f"s{28+s_}"): k(x)
        for tt in range(14):
            for x in rd(0, tt): k(x)
        def stage(u, wait, loads, cnt=False, last=False, extra=None, first=False):
            ns = (u + 1) % 4; ls = (u + 3) % 4
            if wait is not None:
                k(f"s_waitcnt vmcnt({wait})")
                k("s_barrier")
            fill = []
            if loads:
                n = self.f_nxt()
                d = self.f_dma(); a = lda(ls)
                fill = ["\n".join(n[0:3]), f"s_add_u32 m0, s52, {ls*STG}"] + [d[0], a[0], d[1], a[1], d[2], a[2], d[3], a[3]] + ["\n".join(n[3:5]), "\n".join(n[5:])]
            fill += extra or []
            if cnt: fill.append("s_sub_u32 s57, s57, 1\ns_cmp_lg_u32 s57, 0")
            fi = 0
            for tt in range(14):
                if last: k(f"s_waitcnt lgkmcnt({min(15, 26 - 2*tt)})")
                elif tt % 4 == 0: k("s_waitcnt lgkmcnt(15)")
                for i in range(4):
                    k(f"v_mfma_f32_16x16x32_bf16 {vr(acc(tt,i),4)}, {ar(WF+tt*4,4)}, {ar(AR+u*16+i*4,4)}, {0 if first else vr(acc(tt,i),4)}")
                    if i < 2 and tt > 0:
                        if not last: k(rd(ns, tt - 1)[i])
                    elif (i == 2 or tt == 0) and fi < len(fill):
                        k(fill[fi]); fi += 1
            assert fi == len(fill)
            if not last:
                for x in rd(ns, 13): k(x)
        W2T = self.opt.get("w2t", 1)
        k("s_mov_b32 s57, 7")
        k("s_waitcnt vmcnt(8)")
        stage(0, None, True, first=True)
        loop = k.label("floop")
        k(".p2align 6")
        k(f"{loop}:")
        for u in (1, 2, 3, 0): stage(u, 8, True, u == 0)
        k(f"s_cbranch_scc1 {loop}")
        if W2T: k("buffer_load_dword a239, v12, s[16:19], 0 offen")
        if W2T == 2: k("buffer_load_dword a238, v12, s[16:19], s23 offen")
        self.stamp("ffn1 loop end")
        k("s_lshl_b32 s61, s42, 14\nv_add_u32 v16, s61, v3")
        k("s_mul_i32 s12, s43, 7\ns_add_u32 s12, s12, 1\ns_lshr_b32 s12, s12, 1\ns_lshl_b32 s12, s12, 17")
        k("s_add_u32 s13, s12, 0x20000\ns_add_u32 s14, s12, 0x40000\ns_add_u32 s15, s12, 0x60000\ns_sub_u32 s61, s12, 0x1fe00")
        k("s_cmp_eq_u32 s56, 1\ns_cselect_b32 s15, s61, s15")
        k("v_lshlrev_b32 v17, 3, v1\nv_sub_u32 v17, v16, v17")
        k(f"s_mov_b32 s10, {NLOG2E}\ns_mov_b32 s11, {NLOG2E}\ns_mov_b32 s8, 1.0\ns_mov_b32 s9, 1.0")
        XB = 128
        ORD = self.opt.get("ord", [0, 1, 2, 3, 4, 5, 6])
        def wreg(p, sl, mat): return WF + (2 * ORD[p] + mat) * 4 if sl == 1 else XB + (p & 1) * 16 + (sl - 2) * 8 + mat * 4
        def G(p, sl):
            j = ORD[p]
            return [f"v_mfma_f32_16x16x32_bf16 {vr(acc(2*j+mat,i),4)}, {ar(wreg(p,sl,mat),4)}, {ar(AR+sl*16+i*4,4)}, {vr(acc(2*j+mat,i),4)}" for i in range(4) for mat in range(2)]
        def R(p):
            L = []; j = ORD[p]
            for sl in (2, 3):
                for mat in range(2):
                    o_ = sl * STG + mat * 1024 + (j >> 2) * 128; w_ = wreg(p, sl, mat)
                    L += [f"ds_read_b64_tr_b16 {ar(w_,2)}, v{8+(j&3)} offset:{o_}", f"ds_read_b64_tr_b16 {ar(w_+2,2)}, v{8+(j&3)} offset:{o_+2048}"]
            return L
        TM = [20, 24, 12, 4]
        def E(t):
            P1, T1, P2, T2, P3, C = [], [], [], [], [], []
            for i in range(4):
                X, Y = acc(2 * t, i), acc(2 * t + 1, i)
                Tm = TM[i]
                o_ = acc(2 * (t & ~1) + 1, i) + (t & 1) * 2
                P1 += [f"v_pk_mul_f32 {vr(Tm,2)}, {vr(X,2)}, s[10:11]", f"v_pk_mul_f32 {vr(Tm+2,2)}, {vr(X+2,2)}, s[10:11]"]
                T1 += [f"v_exp_f32 v{Tm+r}, v{Tm+r}" for r in range(4)]
                P2 += [f"v_pk_mul_f32 {vr(X,2)}, {vr(X,2)}, {vr(Y,2)}", f"v_pk_mul_f32 {vr(X+2,2)}, {vr(X+2,2)}, {vr(Y+2,2)}",
                       f"v_pk_add_f32 {vr(Tm,2)}, {vr(Tm,2)}, s[8:9]", f"v_pk_add_f32 {vr(Tm+2,2)}, {vr(Tm+2,2)}, s[8:9]"]
                T2 += [f"v_rcp_f32 v{Tm+r}, v{Tm+r}" for r in range(4)]
                P3 += [f"v_pk_mul_f32 {vr(X,2)}, {vr(X,2)}, {vr(Tm,2)}", f"v_pk_mul_f32 {vr(X+2,2)}, {vr(X+2,2)}, {vr(Tm+2,2)}"]
                C += [f"v_cvt_pk_bf16_f32 v{o_}, v{X}, v{X+1}", f"v_cvt_pk_bf16_f32 v{o_+1}, v{X+2}, v{X+3}"]
                if t & 1: C.append(f"buffer_store_dwordx4 {vr(o_-2,4)}, v16, s[48:51], s{12+t//2} offen offset:{1024*i} sc1")
                elif t == 6: C.append(f"buffer_store_dwordx2 {vr(o_,2)}, v17, s[48:51], s15 offen offset:{1024*i} sc1")
            return P1, T1, P2, T2, P3, C
        out = []
        def emit(mf, side):
            n = len(mf); done = 0
            if n == 0: out.extend(side); return
            for q, m_ in enumerate(mf):
                out.append(m_)
                upto = (len(side) * (q + 1) + n - 1) // n
                out.extend(side[done:upto]); done = upto
        out.append("s_waitcnt lgkmcnt(15)")
        emit(G(1, 1) + G(2, 1), [])
        assert max(ORD[1], ORD[2]) <= 2
        out += [f"s_waitcnt vmcnt({W2T}) lgkmcnt(0)", "s_barrier"]
        emit(G(0, 1), R(0))
        out.append("s_waitcnt lgkmcnt(0)")
        emit(G(0, 2) + G(0, 3), R(1))
        for j in range(7):
            P1, T1, P2, T2, P3, C = E(ORD[j])
            m1 = G(j + 3, 1) if j + 3 <= 6 else []
            m2 = (G(j + 1, 2) + G(j + 1, 3)) if j < 6 else []
            mf = m1 + m2
            out.append("s_waitcnt lgkmcnt(0)")
            if j == 5: out.append("s_barrier")
            rr = R(j + 2) if j + 2 <= 6 else []
            if not mf: out.append("s_nop 7")
            lead = mf[:2]; mf = mf[2:]
            emit(lead, rr[:4])
            out.extend(P1)
            h = len(mf) // 2
            emit(mf[:h], rr[4:] + T1)
            out.extend(P2)
            emit(mf[h:], T2)
            out.extend(P3); out.extend(C)
        check_mfma_valu(out)
        for x in out: k(x)
        pf = self.f2_setup() if self.opt.get("splitk", 1) else self.proj_setup(112, HH_OFF, P_W2, self.opt.get("dWS", 4))
        self.stamp("ffn1 epi end")
        npre = self.opt.get("npre", 0)
        for x in pf[:npre]: k(x)
        nd = sum(1 for x in pf[:npre] if " lds" in x)
        k(f"s_lshl_b32 s20, s42, 2\ns_and_b32 s21, s43, 3\ns_add_u32 s20, s20, s21\ns_add_u32 s20, s20, {C_S6}")
        self.arrive("s20", pre=f"s_waitcnt vmcnt({nd}) lgkmcnt(0)")
        self.stamp("S6 arrive")
        for x in pf[npre:]: k(x)

    def ffn2(self):
        k = self.k; acc = self.pacc
        k("s_waitcnt vmcnt(16)")
        self.proj_pre(zero=False)
        k("v_and_b32 v21, 15, v1\ns_lshl_b32 s12, s3, 4\nv_add_u32 v21, s12, v21\nv_lshrrev_b32 v22, 4, v1")
        k("v_lshlrev_b32 v23, 11, v21\nv_lshl_add_u32 v23, v22, 4, v23")
        k(f"v_lshlrev_b32 v20, 5, v22\nv_add_u32 v20, {PERS}, v20")
        GB = 32; X = 64
        k("v_lshlrev_b32 v120, 3, v1")
        for i in range(4): k(f"v_sub_u32 v{116+i}, v{4+i}, v120")
        self.modvec(3, GB)
        for d in range(16):
            k(f"v_accvgpr_read_b32 v{96+d}, a{240+d}")
        for d in range(16): unpack(k, X + 2 * d, X + 2 * d + 1, 96 + d)
        k(f"s_lshl_b32 s12, s40, 17\ns_lshl_b32 s13, s41, 8\ns_add_u32 s12, s12, s13\ns_sub_u32 s13, {4*MB}, s12")
        srd_off(k, 16, P_OUT, "s12", "s13")
        k(f"s_and_b32 s20, s40, 28\ns_add_u32 s20, s20, {C_S6}")
        self.wait("s20", 8, 4)
        self.stamp("S6 done")
        k("s_waitcnt lgkmcnt(0)")
        self.proj_main(28)
        self.stamp("ffn2 loop end")
        self.proj_reduce()
        for u in range(4):
            for h in range(2):
                for q in range(2):
                    x_ = X + 8 * u + 4 * h + 2 * q
                    k(f"v_pk_fma_f32 {vr(x_,2)}, {vr(GB+8*u+4*h+2*q,2)}, {vr(acc(2*u+h,0)+2*q,2)}, {vr(x_,2)}")
            for d in range(4): k(f"v_cvt_pk_bf16_f32 v{96+4*u+d}, v{X+8*u+2*d}, v{X+8*u+2*d+1}")
            k(f"buffer_store_dwordx4 {vr(96+4*u,4)}, v23, s[16:19], 0 offen offset:{64*u}")

    def f2_setup(self):
        k = self.k
        k("s_and_b32 s56, s40, 1")
        k("s_lshl_b32 s61, s56, 2\ns_add_u32 s61, s61, s3\ns_lshl_b32 s61, s61, 10\nv_add_u32 v4, s61, v2\ns_xor_b32 s61, s61, 4096\nv_add_u32 v5, s61, v2")
        k("v_lshlrev_b32 v3, 3, v1\nv_sub_u32 v6, v4, v3\nv_sub_u32 v7, v5, v3")
        k("v_lshrrev_b32 v12, 4, v1\nv_and_b32 v13, 15, v1\nv_lshlrev_b32 v14, 2, v12\nv_xor_b32 v13, v13, v14")
        k("s_and_b32 s61, s3, 1\ns_lshl_b32 s61, s61, 15\nv_lshlrev_b32 v14, 11, v12\nv_add_u32 v14, s61, v14")
        k("v_lshl_add_u32 v8, v13, 4, v14\nv_xor_b32 v13, 1, v13\nv_lshl_add_u32 v9, v13, 4, v14")
        k(f"v_add_u32 v10, {2*7168}, v8\nv_add_u32 v11, {3*7168}, v9\nv_add_u32 v9, 7168, v9")
        k("s_lshl_b32 s52, s3, 12")
        k(f"s_and_b32 s58, s7, 7\ns_lshr_b32 s58, s58, {0 if self.opt.get('pmap', 1) else 1}\ns_lshr_b32 s59, s7, 3\ns_add_u32 s58, s58, s59")
        k("s_lshl_b32 s59, s56, 3")
        for j in range(4):
            k(f"s_add_u32 s61, s58, {j}\ns_and_b32 s61, s61, 3")
            k(f"s_add_u32 s60, s61, s59\ns_mul_i32 s{64+j}, s60, {7<<17}\ns_add_u32 s{68+j}, s{64+j}, {28<<17}")
            k(f"s_lshl_b32 s61, s61, 1\ns_add_u32 s61, s61, s59\ns_mul_i32 s61, s61, {7<<17}\ns_add_u32 s{72+j}, s61, {3<<17}")
        k("s_lshr_b32 s55, s3, 1")
        k(f"s_lshr_b32 s61, s40, 1\ns_lshl_b32 s61, s61, 13\ns_sub_u32 s53, {112*131072}, s61\ns_add_u32 s61, s61, {HH_OFF}")
        srd_off(k, 32, 4, "s61", "s53")
        k(f"s_lshl_b32 s61, s41, 8\ns_sub_u32 s53, {3584*2048}, s61")
        srd_off(k, 36, P_W2, "s61", "s53")
        pf = []
        k(f"s_mul_i32 s76, s55, {7<<17}\ns_lshl_b32 s77, s55, 17")
        for s_ in range(self.F2L):
            src = f"s_add_u32 s54, s{72+s_}, s76" if s_ < 4 else f"s_add_u32 s54, s{64+s_-4}, s77"
            pf.append(f"{src}\ns_lshr_b32 s54, s54, 1\ns_add_u32 m0, s52, {s_*16384}\ns_nop 0")
            pf += self.f2_dma()
        return pf
    F2L = 6
    def f2_dma(self):
        return [f"buffer_load_dwordx4 v{8+j}, s[36:39], s54 offen offset:{1024*j} lds" for j in range(4)]
    def ffn2b(self):
        k = self.k
        ACC = 128; RA = 32
        def acc(t, i): return ACC + (t * 2 + i) * 4
        k("v_lshrrev_b32 v12, 4, v1\nv_bfe_u32 v13, v1, 2, 2\nv_and_b32 v14, 3, v1")
        k("v_and_b32 v15, 1, v12\nv_xor_b32 v15, v15, v14\nv_lshlrev_b32 v15, 4, v15\nv_lshl_add_u32 v15, v12, 10, v15\nv_lshl_add_u32 v15, v13, 8, v15")
        k("v_and_b32 v14, 1, v14\nv_lshl_add_u32 v15, v14, 3, v15")
        for u in range(4):
            k(f"v_xor_b32 v14, {u}, v13\nv_lshl_add_u32 v{RA+2*u}, v14, 6, v15\nv_xor_b32 v{RA+2*u+1}, 8, v{RA+2*u}")
        for t in range(8): k(f"v_add_u32 v{RA+8+t}, 0x10000, v{RA+t}")
        k("v_and_b32 v21, 15, v1\ns_lshl_b32 s12, s3, 4\nv_add_u32 v21, s12, v21")
        k("v_lshlrev_b32 v23, 11, v21\nv_lshl_add_u32 v23, v12, 4, v23")
        k(f"v_lshlrev_b32 v22, 5, v12\nv_add_u32 v22, {PERS}, v22")
        GB = 192; X = 64
        for u in range(4):
            for h in range(2): k(f"ds_read_b128 {vr(GB+8*u+4*h,4)}, v22 offset:{3*512 + u*128 + h*16}")
        for d in range(16): k(f"v_accvgpr_read_b32 v{96+d}, a{240+d}")
        for d in range(16): unpack(k, X + 2 * d, X + 2 * d + 1, 96 + d)
        k(f"s_lshl_b32 s12, s40, 17\ns_lshl_b32 s13, s41, 8\ns_add_u32 s12, s12, s13\ns_sub_u32 s13, {4*MB}, s12")
        srd_off(k, 16, P_OUT, "s12", "s13")
        srd_off(k, 24, 4, XCH_OFF, 256 * 16384)
        k("s_lshl_b32 s12, s40, 3\ns_add_u32 s12, s12, s41\ns_lshl_b32 s12, s12, 14\ns_lshl_b32 s13, s3, 12\ns_add_u32 s12, s12, s13\ns_xor_b32 s13, s12, 0x20000")
        for s_ in range(4): k(f"s_mov_b32 s{44+2*s_}, s{72+s_}\ns_add_u32 s{45+2*s_}, s{72+s_}, {7<<17}")
        k(f"s_and_b32 s20, s40, 28\ns_add_u32 s20, s20, {C_S6}")
        k("s_waitcnt vmcnt(0) lgkmcnt(0)")
        self.wait("s20", 8, 4)
        self.stamp("S6 done")
        def lda(slot, so, special):
            L = []
            for u in range(2):
                for i in range(2):
                    r = 32 + slot * 16 + u * 8 + i * 4
                    if special: L.append(f"buffer_load_dwordx2 {ar(r,2)}, v{6+i}, s[32:35], s{so+u} offen{self.LD}\nbuffer_load_dwordx2 {ar(r+2,2)}, v{6+i}, s[32:35], s{so+u} offen offset:512{self.LD}")
                    else: L.append(f"buffer_load_dwordx4 {ar(r,4)}, v{4+i}, s[32:35], s{so+u} offen{self.LD}")
            return L
        def rd(ws, u, t):
            off = (ws & 3) * 16384 + u * 8192; va = RA + 8 * (ws >> 2) + t
            return [f"ds_read_b64_tr_b16 {ar(t*4,2)}, v{va} offset:{off}", f"ds_read_b64_tr_b16 {ar(t*4+2,2)}, v{va} offset:{off+4096}"]
        for s_ in range(2):
            for x in lda(s_, 44 + 2 * s_, True): k(x)
        for t in range(8):
            for x in rd(0, 0, t): k(x)
        def substep(st, u, fill, last=False, first=False):
            nst, nu = (st, 1) if u == 0 else (st + 1, 0)
            fi = 0
            for t in range(8):
                k(f"s_waitcnt lgkmcnt({14 - 2*t if last else 12})")
                for i in range(2):
                    k(f"v_mfma_f32_16x16x32_bf16 {vr(acc(t,i),4)}, {ar(t*4,4)}, {ar(32+(st%4)*16+u*8+i*4,4)}, {0 if first else vr(acc(t,i),4)}")
                    if t > 0 and not last: k(rd(nst % 8, nu, t - 1)[i])
                    if (i == 1 or t == 0) and fi < len(fill):
                        if fill[fi]: k(fill[fi])
                        fi += 1
            if not last:
                for x in rd(nst % 8, nu, 7): k(x)
            assert fi == len(fill), (fi, len(fill))
        OFF0, OFF1 = (0, 2, 5), (1, 4, 6)
        L_ = self.F2L
        def stage(st, wait, loads, cnt=False, special=False):
            k(f"s_waitcnt vmcnt({wait})")
            if st % 2 == 0: k("s_barrier")
            f1, f2 = [], []
            if loads:
                d = self.f2_dma()
                jw = (st + L_ - 4) % 8
                wso = f"s_add_u32 s54, s{64+jw}, s77\ns_lshr_b32 s54, s54, 1"
                m0 = f"s_add_u32 m0, s52, {((st+L_)%8)*16384}"
                if special:
                    a = lda((st + 3) % 4, 50, True)
                    f1 = [wso, m0, a[0], d[0], a[1], d[1]]
                else:
                    a = lda((st + 3) % 4, 44, False)
                    ja = (st - 1) % 8
                    f1 = [wso, m0 + f"\ns_add_u32 s44, s{64+ja}, s58", d[0], f"s_add_u32 s45, s{64+ja}, s59", a[0], "", d[1], "", a[1]]
                f2 = [d[2], "", "", a[2], "", d[3], "", a[3]]
                if jw == 7: f2.append("s_mov_b32 s77, s60\ns_mov_b32 s60, s61\ns_mov_b32 s61, 0x20000000")
                if cnt: f2.append("s_mov_b32 s58, s46\ns_mov_b32 s59, s47\ns_mov_b32 s46, s48\ns_mov_b32 s47, s49\ns_sub_u32 s57, s57, 1\ns_cmp_lg_u32 s57, 0")
            substep(st, 1, f1)
            substep(st + 1, 0, f2)
        k(f"s_lshl_b32 s60, s55, 18\ns_add_u32 s60, s60, {2<<17}\ns_lshl_b32 s61, s55, 17\ns_add_u32 s61, s61, {5<<17}")
        k(f"s_mov_b32 s58, 0\ns_mov_b32 s59, {1<<17}\ns_mov_b32 s57, 3")
        k("s_waitcnt vmcnt(12)")
        self.stamp("f2 A0 in")
        substep(0, 0, lda(2, 48, True), first=True)
        stage(0, 8, True, special=True)
        k(f"s_mov_b32 s46, {OFF0[1]<<17}\ns_mov_b32 s47, {OFF1[1]<<17}\ns_mov_b32 s48, {OFF0[2]<<17}\ns_mov_b32 s49, {OFF1[2]<<17}")
        self.stamp("f2 st0 done")
        loop = k.label("f2loop")
        k(".p2align 6")
        k(f"{loop}:")
        for st in range(1, 9): stage(st, 8, True, cnt=(st == 8))
        k(f"s_cbranch_scc1 {loop}")
        self.stamp("f2 st24 done")
        stage(25, 8, False); stage(26, 0, False)
        substep(27, 1, [], last=True)
        self.stamp("ffn2 loop end")
        SND = 224; RCV = 240
        for u in range(4):
            if u == 3: k("s_nop 3")
            for h in range(2):
                for q in range(2): k(f"v_cvt_pk_bf16_f32 v{SND+4*u+2*h+q}, v{acc(2*u+h,1)+2*q}, v{acc(2*u+h,1)+2*q+1}")
            k(f"buffer_store_dwordx4 {vr(SND+4*u,4)}, v2, s[24:27], s13 offen offset:{u*1024} sc1")
        self.stamp("X sent")
        lp = k.label("xpoll"); dn = k.label("xdone")
        k("s_mov_b32 s97, 0")
        k(f"{lp}:")
        for u in range(4): k(f"buffer_load_dwordx4 {vr(RCV+4*u,4)}, v2, s[24:27], s12 offen offset:{u*1024} sc1")
        k("s_waitcnt vmcnt(0)")
        k(f"v_max3_u32 v48, v{RCV}, v{RCV+1}, v{RCV+2}\nv_max3_u32 v49, v{RCV+3}, v{RCV+4}, v{RCV+5}")
        for r in range(6, 16, 4):
            k(f"v_max3_u32 v48, v48, v{RCV+r}, v{RCV+r+1}")
            if r + 3 < 16: k(f"v_max3_u32 v49, v49, v{RCV+r+2}, v{RCV+r+3}")
        k("v_max_u32 v48, v48, v49")
        k("v_cmp_eq_u32 vcc, -1, v48")
        k(f"s_cbranch_vccz {dn}")
        k(f"s_add_u32 s97, s97, 1\ns_cmp_lt_u32 s97, 20000\ns_cbranch_scc1 {lp}")
        k(f"{dn}:")
        self.stamp("X done")
        k("s_mov_b32 s20, 0xffff0000\ns_mov_b32 s21, 0xffff0000")
        for u in range(4):
            for h in range(2):
                for q in range(2):
                    t_ = acc(2 * u + h, 1) + 2 * q
                    unpack(k, t_, t_ + 1, RCV + 4 * u + 2 * h + q)
                    k(f"v_pk_add_f32 {vr(acc(2*u+h,0)+2*q,2)}, {vr(acc(2*u+h,0)+2*q,2)}, {vr(t_,2)}")
            k("s_mov_b64 exec, s[20:21]")
            for r in range(4): k(f"v_swap_b32 v{acc(2*u,0)+r}, v{acc(2*u+1,0)+r}")
            k("s_mov_b64 exec, -1")
            for h in range(2):
                for q in range(2):
                    x_ = X + 8 * u + 4 * h + 2 * q
                    k(f"v_pk_fma_f32 {vr(x_,2)}, {vr(GB+8*u+4*h+2*q,2)}, {vr(acc(2*u+h,0)+2*q,2)}, {vr(x_,2)}")
            for d in range(4): k(f"v_cvt_pk_bf16_f32 v{96+4*u+d}, v{X+8*u+2*d}, v{X+8*u+2*d+1}")
            k(f"buffer_store_dwordx4 {vr(96+4*u,4)}, v23, s[16:19], 0 offen offset:{64*u}")

def build_mega(name="mega_kernel", opt=None):
    opt = opt if opt is not None else {}
    m = M(name, opt)
    m.entry()
    m.p0()
    up = opt.get("upto", 9)
    if up >= 1: m.qkv()
    if up >= 2: m.attn()
    if up >= 3: m.wo_ln2()
    if up >= 4: m.ffn1()
    if up >= 5: (m.ffn2b if opt.get("splitk", 1) else m.ffn2)()
    return m.finish()

if __name__ == "__main__":
    import json, sys
    NAME = "adaLN_cond__linear_kernel_hedgehog__glu_gated_swiglu__prompt"
    hdr = open(f"cdna_kernels/{NAME}.s.ref").read().split("; Override launch")[0]
    emit_file("mega.s", [build_mega("mega_kernel", {})], header=hdr)
    emit_file("final.s", [build_mega(NAME + "_kernel", {})], header=hdr)
    t = open("final.s").read().replace(f"; @launch kernel={NAME}_kernel grid", "; @launch grid")
    open("final.s", "w").write(t)
    o = {"stamp": 1}
    emit_file("mega_st.s", [build_mega("mega_kernel", o)], header=hdr)
    json.dump(o["labels"], open("mega_st.json", "w"))
    import ast
    variants = ast.literal_eval(sys.argv[1]) if len(sys.argv) > 1 else {}
    for nm, ex in variants.items():
        o = dict({"stamp": 1}, **ex)
        emit_file(f"mega{nm}_st.s", [build_mega("mega_kernel", o)], header=hdr)
        json.dump(o["labels"], open(f"mega{nm}_st.json", "w"))
```
